```python
import torch

def _softmax(x, axis=-1):
    return torch.softmax(x, dim=axis)
def _gelu(x):
    return torch.nn.functional.gelu(x, approximate="tanh")
def _silu(x):
    return torch.nn.functional.silu(x)
def _sigmoid(x):
    return torch.sigmoid(x)
def _layernorm(x, axis=-1, eps=1e-5):
    m = x.mean(dim=axis, keepdim=True)
    v = x.var(dim=axis, keepdim=True, unbiased=False)
    return (x - m) / torch.sqrt(v + eps)
def _scatter_add(tgt, idx, src, axis=0):
    return tgt.clone().index_add_(axis, idx, src)
def _segment_sum(src, seg, n):
    out = torch.zeros((n,) + src.shape[1:], dtype=src.dtype)
    return out.index_add_(0, seg, src)
def _pad(x, pw):
    flat = tuple(v for pair in reversed(pw) for v in pair)
    return torch.nn.functional.pad(x, flat)

kernel_name = 'standalone__mha_softmax__near_ridge'

def setup_inputs():

    _w = (lambda a: (lambda t: t.to(torch.bfloat16) if t.is_floating_point() else t)(torch.as_tensor(a)))
    B, H, Sq, Sk, D = 32, 16, 256, 256, 256
    return {
        "q": _w((lambda *s: torch.randn(*s, dtype=torch.bfloat16) * 0.8)(B, H, Sq, D)),
        "k": _w((lambda *s: torch.randn(*s, dtype=torch.bfloat16) * 0.8)(B, H, Sk, D)),
        "v": _w((lambda *s: torch.randn(*s, dtype=torch.bfloat16) * 0.05)(B, H, Sk, D)),
    }

def reference(q, k, v):
    scale = q.shape[-1] ** -0.5
    scores = torch.einsum("bhqd,bhkd->bhqk", q, k) * scale
    p = _softmax(scores, axis=-1)
    return torch.einsum("bhqk,bhkd->bhqd", p, v)
```

```python
import re
AG = 256
def vr(a, n=1):
    p, k = ("a", a - AG) if a >= AG else ("v", a)
    return f"{p}{k}" if n == 1 else f"{p}[{k}:{k+n-1}]"
def rng(a, n=1): return set(range(a, a + n))

class I:
    __slots__ = ("txt", "kind", "rd", "wr", "srcc", "tag", "states", "passes")
    def __init__(self, txt, kind, rd=(), wr=(), srcc=(), tag=None, states=1, passes=0):
        self.txt = txt; self.kind = kind; self.rd = set(rd); self.wr = set(wr); self.srcc = set(srcc)
        self.tag = tag; self.states = states; self.passes = passes

HZ = {4: dict(ab=8, cov=6, other=8, war=3), 8: dict(ab=12, cov=10, other=12, war=7)}
VAL = ("valu", "trans", "perm")
class Prog:
    def __init__(self):
        self.out = []; self.lds_q = []; self.vm_q = []; self.vm_done = 0; self.nops = 0; self.nopstates = 0
    def _dist_needed(self, ins):
        need = 0; d = 0
        touch = ins.rd | ins.wr
        for p in reversed(self.out):
            if d >= 14: break
            req = 0
            if p.kind == "mfma":
                hz = HZ[p.passes]
                if ins.kind == "mfma":
                    if p.wr & (ins.rd - ins.srcc): req = hz["ab"]
                    elif p.wr & ins.srcc and p.wr != ins.srcc: req = hz["cov"]
                    elif p.wr & ins.wr and p.wr != ins.srcc: req = hz["other"]
                else:
                    if p.wr & touch: req = hz["other"]
                    if p.srcc & ins.wr: req = max(req, hz["war"])
            elif p.kind in VAL:
                if ins.kind == "mfma" and p.wr & ins.rd: req = 2
                if ins.kind == "perm" and p.wr & ins.rd: req = 2
                if ins.kind == "rfl" and p.wr & ins.rd: req = 1
                if p.kind == "trans" and p.wr & ins.rd: req = max(req, 1)
                if p.tag == "accw" and ins.kind in ("dsw", "store") and p.wr & ins.rd: req = max(req, 2)
            elif p.kind == "store":
                if ins.wr & p.rd: req = 2
            elif p.kind == "dsw":
                if ins.wr & p.rd and ins.kind in VAL: req = 1
            elif p.kind == "salu":
                if p.tag == "m0" and ins.kind == "dma": req = 1
            elif p.kind == "rfl":
                if ins.kind in ("dma", "store", "load"): req = 5
                elif ins.kind in VAL or ins.kind == "salu": req = 2
            if req > d: need = max(need, req - d)
            d += p.states
        return need
    def _emit(self, ins):
        n = self._dist_needed(ins)
        if n > 0:
            self.out.append(I(f"s_nop {n-1}", "nop", states=n)); self.nops += 1; self.nopstates += n
        self.out.append(ins)
    def wait_lgkm(self, n):
        if len(self.lds_q) > n:
            assert n <= 15
            self.out.append(I(f"s_waitcnt lgkmcnt({n})", "wait"))
            self.lds_q = self.lds_q[len(self.lds_q) - n:] if n else []
    def wait_vm(self, n):
        if len(self.vm_q) - self.vm_done > n:
            assert n <= 63
            self.out.append(I(f"s_waitcnt vmcnt({n})", "wait"))
            self.vm_done = len(self.vm_q) - n
    def vm_index(self, tag): return max(i for i, t in enumerate(self.vm_q) if t == tag)
    def wait_vm_tag(self, tag): self.wait_vm(len(self.vm_q) - 1 - self.vm_index(tag))
    def landed(self, tag): return tag in self.vm_q and self.vm_index(tag) < self.vm_done
    def lds_pending(self, regs): return any(k == "dsr" and w & regs for k, w in self.lds_q)
    def wait_regs(self, regs):
        last = -1
        for i, (k, w) in enumerate(self.lds_q):
            if k == "dsr" and w & regs: last = i
        if last >= 0: self.wait_lgkm(len(self.lds_q) - 1 - last)
    def add(self, ins):
        touch = ins.rd | ins.wr
        last = -1
        for i, (k, w) in enumerate(self.lds_q):
            if k == "dsr" and w & touch: last = i
        if last >= 0: self.wait_lgkm(len(self.lds_q) - 1 - last)
        if ins.kind in ("dsr", "dsw") and len(self.lds_q) >= 15: self.wait_lgkm(8)
        self._emit(ins)
        if ins.kind in ("dsr", "dsw"): self.lds_q.append((ins.kind, set(ins.wr)))
        if ins.kind in ("dma", "store", "load"):
            self.vm_q.append(ins.tag)
            assert len(self.vm_q) - self.vm_done <= 63, "vmcnt overflow"
    def raw(self, txt, kind="salu", **kw): self.add(I(txt, kind, **kw))
    def text(self): return "\n".join(i.txt for i in self.out)

def mfma16(d, a, b, c):
    cs = "0" if c is None else vr(c, 4)
    sc = set() if c is None else rng(c, 4)
    return I(f"v_mfma_f32_16x16x32_bf16 {vr(d,4)}, {vr(a,4)}, {vr(b,4)}, {cs}", "mfma", rd=rng(a,4) | rng(b,4) | sc, wr=rng(d,4), srcc=sc, passes=4)
def ds_r128(d, a, off): return I(f"ds_read_b128 {vr(d,4)}, v{a} offset:{off}", "dsr", rd={a}, wr=rng(d,4))
def ds_tr(d, a, off): return I(f"ds_read_b64_tr_b16 {vr(d,2)}, v{a} offset:{off}", "dsr", rd={a}, wr=rng(d,2))
def ds_w64(a, s, off): return I(f"ds_write_b64 v{a}, {vr(s,2)} offset:{off}", "dsw", rd={a} | rng(s,2))
def valu(op, d, *src, kind="valu", tag=None):
    rd = set(); ss = []
    for s in src:
        if isinstance(s, int): rd.add(s); ss.append(vr(s))
        else: ss.append(s)
    return I(f"{op} {vr(d)}, " + ", ".join(ss), kind, rd=rd, wr={d}, tag=tag)
def trans(op, d, s): return valu(op, d, s, kind="trans")
def salu(txt, tag=None): return I(txt, "salu", tag=tag)
def accrd(d, a): return valu("v_accvgpr_read_b32", d, a)
def accwr(a, s): return valu("v_accvgpr_write_b32", a, s, tag="accw")
def swap(kind, a, b): return I(f"v_permlane{kind}_swap_b32 v{a}, v{b}", "perm", rd={a, b}, wr={a, b})
```

```python
ORD = "q0 k0 q1 k1 q2 k2 q3 k3 v0 v1 v2 v3 q01 q11 k01 k11 q21 q31 k21 k31 v01 v11 v21 v31"
def B(X=None, **kw):
    x = dict(pv=160, qk1=160, qk3=208, pv10=128, pv11=136, pv12=152, pv13=160); x.update(X or {})
    d = dict(X=x, ipf=2, stdelay=3000, order=ORD); d.update(kw)
    return d

def B1(X=None, Wp=None, **kw):
    w = dict(qk0=5); w.update(Wp or {})
    return B(X=X, Wp=w, **kw)

def B2(X=None, **kw):
    x = dict(pv=153, qk10=164, qk11=164, qk12=164, qk13=128); x.update(X or {})
    d = dict(ksp={(1,0):8,(1,1):8,(1,2):8,(1,3):8}, prel={(1,0):(6,10), (1,1):(8,)}); d.update(kw)
    return B1(X=x, **d)
def T(a, b, c, d): return dict(pv10=a, pv11=b, pv12=c, pv13=d)
def B3(X=None, **kw):
    x = dict(T(120, 124, 176, 232), sm1=220); x.update(X or {})
    d = dict(stdelay=3500); d.update(kw)
    return B2(X=x, **d)
```

```python
import sys, json, math, struct
from asmfw3 import *
KN = "standalone__mha_softmax__near_ridge_kernel"

HDR = """; Fused attention: softmax(Q K^T / 16) V, B*H = 512 heads, S = D = 256, bf16 in/out, fp32 accumulate.
"""
def SB(z): return 64 * z if z < 3 else AG
def PB(z): return 32 * z
TMP3 = 128; OACC = 176; KEEP = 152
QFB = (AG + 64, 192); KF = AG + 96; VFB = AG; HOLD = AG + 128
DL, KB, QB, VB, WB, RB, SO = range(224, 231)
CA = 232; CQ = 236; CW = 238; CR = 242; RINV = 244; T0 = 248; T1 = 249; CH = 250; T2 = 254; T3 = 255; MXR = (231, 243, 242)
SRD = {"q": 16, "k": 20, "v": 24, "o": 28}
C_LOG2E = math.log2(math.e) / 16.0
def f2u(x): return struct.unpack("<I", struct.pack("<f", x))[0]
XDEF = dict(qk0=128, qk3=160, sm=250, pv=176, qk1=150, sm1=250, pv1=140)

def gen(W=6, WS=8, X=None, ld="nt", st="sc1", stamps=False, diag=None, cyc=0, nomem=False,
        qpos=(1, 3), ks=3, stdelay=0, Wp=None, smbar=True, ipf=4, ipfpol='', rot=None, hmap=0, wlast=None, wsr=None, st0=None, st1=None, tlb=False, ksp=None, zfin=True, order=None, w0=None, ipfearly=True, stress=None, trickle=None, prel=None):
    XX = dict(XDEF); XX.update(X or {})
    WW = {k: W for k in XX}; WW.update(Wp or {})
    for D_ in (XX, WW):
        for j in range(4):
            D_.setdefault(f"qk0{j}", D_["qk3" if j == 3 else "qk0"]); D_.setdefault(f"qk1{j}", D_["qk1"])
            D_.setdefault(f"pv0{j}", D_["pv"]); D_.setdefault(f"pv1{j}", D_["pv1"])
    KS = {(h, j): ks for h in range(2) for j in range(4)}; KS.update(ksp or {})
    p = Prog(); R = p.raw; A = p.add
    nstamp = [0]
    log = []
    def stamp():
        try: log.append(f"{S['n'] + 64 - len(stq)}/{S['skips']}")
        except NameError: pass
        if stamps:
            R(f"{'s_memtime' if cyc == 1 else 's_memrealtime'} s[{44+2*nstamp[0]}:{45+2*nstamp[0]}]")
            if cyc == 2: R("s_memtime s[94:95]")
            p.out.append(I("s_waitcnt lgkmcnt(0)", "wait")); p.lds_q = []
            if cyc == 2: R(f"s_mov_b32 s{45+2*nstamp[0]}, s94")
            nstamp[0] += 1
    stamp()
    R("s_load_dwordx8 s[4:11], s[0:1], 0")
    R("s_cmp_ge_u32 s2, 256"); R("s_cbranch_scc1 L_end")
    if stamps: R("s_load_dwordx2 s[14:15], s[0:1], 40")
    WV, L = T0, T1
    a, b, c, d = CH, CH + 1, CH + 2, CH + 3
    A(valu("v_lshrrev_b32", WV, "6", 0))
    A(valu("v_and_b32", L, "63", 0))
    A(I(f"v_readfirstlane_b32 s3, v{WV}", "rfl", rd={WV}))
    A(valu("v_lshrrev_b32", b, "3", L)); A(valu("v_and_b32", a, "6", b)); A(valu("v_and_b32", c, "7", L))
    A(valu("v_xor_b32", a, a, c)); A(valu("v_lshlrev_b32", a, "4", a)); A(valu("v_lshl_add_u32", DL, b, "9", a))
    R(f"s_lshl_b32 s37, s2, {18 if hmap else 17}"); R("s_lshl_b32 s39, s3, 10")
    if rot is not None:
        R(f"s_lshr_b32 s36, s2, {rot}"); R("s_and_b32 s36, s36, 3"); R("s_lshl_b32 s36, s36, 7"); R("s_or_b32 s37, s37, s36")
    R("s_lshl_b32 s36, s3, 15"); R("s_add_u32 s40, s37, s36")
    R("s_lshl_b32 s36, s3, 12"); R("s_add_u32 s42, s37, s36")
    def code_prefetch():
        nl = ipf * 8; sh = (ipf * 1024).bit_length() - 1
        R("s_getpc_b64 s[12:13]"); R("L_pc:")
        R("s_lshr_b32 s36, s2, 3"); R(f"s_and_b32 s36, s36, {64 // ipf - 1}"); R(f"s_lshl_b32 s36, s36, {sh}")
        A(valu("v_and_b32", a, str(nl - 1), 0))
        A(valu("v_lshl_add_u32", a, a, "7", "s36"))
        A(valu("v_min_u32", a, "L_end-L_pc", a))
        A(valu("v_mov_b32", b, "s13"))
        A(I(f"v_add_co_u32 v{a}, vcc, s12, v{a}", "valu", rd={a}, wr={a}))
        R("s_cmp_lg_u32 s3, 3"); R("s_nop 0")
        A(I(f"v_addc_co_u32 v{b}, vcc, 0, v{b}, vcc", "valu", rd={b}, wr={b}))
        R("s_cbranch_scc1 L_nopf")
        A(I(f"global_load_dword v{T3}, v[{a}:{b}], off {ipfpol}", "wait", rd={a, b}, wr={T3}))
        R("L_nopf:")
    if ipf and ipfearly: code_prefetch()
    p.out.append(I("s_waitcnt lgkmcnt(0)", "wait"))
    def srd(nm, ptr):
        s = SRD[nm]
        R(f"s_mov_b32 s{s}, s{ptr}"); R(f"s_and_b32 s{s+1}, s{ptr+1}, 0xffff"); R(f"s_mov_b32 s{s+2}, 0x4000000"); R(f"s_mov_b32 s{s+3}, 0x20000")
    srd("q", 4)

    tiles = []
    for j in range(4): tiles += [(0, "q", j), (0, "k", j)]
    vs = [(0, "v", j) for j in range(4)] + [(1, "k", 0)]
    for k, pos in enumerate(qpos): vs.insert(pos, (1, "q", k))
    tiles += vs
    for j in range(1, 4):
        if j >= len(qpos): tiles.append((1, "q", j))
        tiles.append((1, "k", j))
    tiles += [(1, "v", j) for j in range(4)]
    if order:
        tiles = [(int(x[2]) if len(x) > 2 else 0, x[0], int(x[1])) for x in order.split()]
        assert len(set(tiles)) == 24
    NT = len(tiles); assert NT == 24
    TI = {t: i for i, t in enumerate(tiles)}; ND = NT * 8
    XT = (1, "k", 3)
    free = [0, 1, 2, 3, 4]; slot_of = {}; pend = []; relset = set(); avail = {k: 8 for k in range(5)}; partial = set()
    def slot(t): return slot_of[t] * 32768
    def release(t):
        relset.add(t)
        if t[:2] == (1, "v"): return
        avail[slot_of[t]] = 8
        if t not in partial: free.append(slot_of[t])
    def release_part(t, n):
        avail[slot_of[t]] = n
        if t not in partial: partial.add(t); free.append(slot_of[t])
    def barrier(drain=True):
        if drain: p.wait_lgkm(0)
        p.out.append(I("s_barrier", "bar"))
        if drain:
            for t in pend: release(t)
            pend.clear()
    S = {"n": 0, "acc": 0.0, "X": XX["qk0"], "W": WW["qk0"], "skips": 0}
    busy = {}
    def wait_loads(k):
        li = [i for i, t in enumerate(p.vm_q) if t[0] == "L"]
        if len(li) <= k or li[-k - 1] < p.vm_done: return
        p.out.append(I(f"s_waitcnt vmcnt({k})", "wait"))
        p.vm_done = max(p.vm_done, li[-k - 1] + 1)
    def dma(must=True):
        n = S["n"]; ti, j = divmod(n, 8)
        t = tiles[ti]; h, m, db = t
        if j == 0:
            if not free:
                assert not must, ("no free slot", t)
                return False
            slot_of[t] = free.pop(0)
        if j >= avail[slot_of[t]]:
            assert not must, "piece not released"
            return False
        if j >= 6 and slot_of[t] in busy:
            regs = busy[slot_of[t]]
            if regs is None:
                assert not must, "staging in progress"
                return False
            if p.lds_pending(regs): p.wait_lgkm(0)
            del busy[slot_of[t]]
        if m == "q": R(f"s_xor_b32 s96, s{40+h}, {db*128 + j*4096}")
        else: R(f"s_xor_b32 s96, s{42+h}, {db*128 + j*16384}")
        A(salu(f"s_add_u32 m0, s39, {slot(t) + j*4096}", tag="m0"))
        wf = S['W']; wi = int(wf) + (1 if int((n + 1) * (wf % 1)) > int(n * (wf % 1)) else 0)
        wait_loads((wlast[1] if wlast and n >= ND - wlast[0] else (max(wi, w0[1] - max(0, n - w0[0])) if w0 else wi)) - 1)
        if nomem and ti >= 5: A(I("s_nop 0", "dma", rd={DL}, tag=("L", n)))
        else: A(I(f"buffer_load_dwordx4 v{DL}, s[{SRD[m]}:{SRD[m]+3}], s96 offen {ld} lds", "dma", rd={DL}, tag=("L", n)))
        S["n"] += 1
        if trickle and S["n"] >= trickle[0] and (S["n"] - trickle[0]) % trickle[1] == 0 and S["n"] < trickle[2]: store(early=True)
        return True
    qtodo = [t for t in tiles if t[1] == "q"]; qbuf_free = [True, True]; qread = set(); qrel = []
    def q_emit(t):
        bq = QFB[t[2] & 1]
        A(valu("v_add_u32", CQ, str(slot(t)), QB)); A(valu("v_xor_b32", CQ + 1, "64", CQ))
        for z in range(4):
            for kk in range(2): A(ds_r128(bq + 8 * z + 4 * kk, CQ + kk, z * 8192))
        qbuf_free[t[2] & 1] = False; qread.add(t); qrel.append([t, 0]); qtodo.remove(t)
    def q_service(cost):
        for e in list(qrel):
            e[1] += cost
            regs = rng(QFB[e[0][2] & 1], 32)
            if p.lds_pending(regs) and e[1] > 400: p.wait_lgkm(0)
            if not p.lds_pending(regs): release(e[0]); qrel.remove(e)
        if qtodo:
            t = qtodo[0]
            if qbuf_free[t[2] & 1] and p.landed(("L", 8 * TI[t] + 7)): q_emit(t)
    stq = [(h, db, s) for h in range(2) for db in range(4) for s in range(8)]
    ready = set(); o1done = set(); stg = {j: (1, "v", j) for j in range(4)}
    def readback(t, db):
        A(valu("v_add_u32", CR, str(slot(t)), RB))
        for s in range(8): A(ds_r128(HOLD + 32 * db + 4 * s, CR, s * 4096))
    def st_service():
        for db in sorted(o1done):
            if (1, db) not in ready and not any(x[:2] == (0, db) for x in stq):
                readback(stg[db], db); ready.add((1, db)); return
    def store(early=False):
        h, db, s = stq[0]
        if (h, db) not in ready and (h, db, s) not in ready: return False
        stq.pop(0)
        R(f"s_xor_b32 s97, s{40+h}, {db*128 + s*4096}")
        k = 63 - len(stq)
        ws = WS
        for lim, w_ in (wsr or []):
            if k < lim: ws = w_; break
        if not early:
            if not S.get("drained"): p.wait_vm(0); S["drained"] = True
            if ws: p.wait_vm(ws - 1)
        pol = st0[1] if st0 and k < st0[0] else (st1[1] if st1 and k >= 64 - st1[0] else st)
        reg = HOLD + 32 * db + 4 * s
        if nomem: return True
        A(I(f"buffer_store_dwordx4 {vr(reg,4)}, v{SO}, s[28:31], s97 offen {pol}", "store", rd=rng(reg, 4) | {SO}, tag=("S", h, db, s)))
        return True
    def tick(cost):
        q_service(cost); st_service()
        S["acc"] += cost
        if S["acc"] >= S["X"]:
            if S["n"] < ND:
                ok = dma(must=False)
                if ok and S["n"] == ND: S["acc"] -= stdelay
            else: ok = bool(stq) and store()
            if ok: S["acc"] -= S["X"]
            else: S["skips"] += 1
            S["acc"] = min(S["acc"], S["X"] + 32)
    def wait_landed(n):
        W = int(S["W"])
        forced = S["n"] <= n + W - 1
        while S["n"] <= n:
            dma(); q_service(0)
        while S["n"] < min(n + W, ND) and dma(must=False): q_service(0)
        wait_loads(S["n"] - 1 - n)
        if forced and S["n"] < ND:
            dma(must=False); S["acc"] = 0
    for _ in range(min(8, w0[1] if w0 else int(S['W']))): dma()
    srd("k", 6)
    while w0 and S["n"] < w0[1]: dma()
    if ipf and not ipfearly: code_prefetch()
    srd("v", 8); srd("o", 10)
    R(f"s_add_u32 s41, s40, {0x20000 if hmap else 0x2000000}"); R(f"s_add_u32 s43, s42, {0x20000 if hmap else 0x2000000}")
    if tlb:
        A(valu("v_lshlrev_b32", a, "25", L)); A(valu("v_and_b32", a, "0x2000000", a))
        R("s_cmp_lg_u32 s3, 2"); R("s_cbranch_scc1 L_notlb")
        R("s_mov_b64 exec, 3")
        for nm in ("k", "v", "o", "q"):
            A(I(f"buffer_load_dword v{T3}, v{a}, s[{SRD[nm]}:{SRD[nm]+3}], s40 offen nt", "wait", rd={a}, wr={T3}))
        R("s_mov_b64 exec, -1")
        R("L_notlb:")
    A(valu("v_lshrrev_b32", c, "4", L))
    A(valu("v_and_b32", a, "6", L)); A(valu("v_xor_b32", a, a, c)); A(valu("v_lshlrev_b32", a, "4", a))
    A(valu("v_and_b32", b, "15", L)); A(valu("v_lshl_add_u32", KB, b, "7", a))
    A(valu("v_bfe_u32", b, L, "3", "1")); A(valu("v_lshlrev_b32", b, "12", b))
    A(valu("v_and_b32", d, "7", L)); A(valu("v_lshl_add_u32", b, d, "7", b)); A(valu("v_lshl_add_u32", b, WV, "10", b))
    A(valu("v_add_u32", QB, a, b))
    A(valu("v_lshrrev_b32", a, "1", c)); A(valu("v_xor_b32", a, a, d)); A(valu("v_lshl_add_u32", b, a, "4", b))
    A(valu("v_and_b32", a, "1", c)); A(valu("v_lshl_add_u32", WB, a, "3", b))
    A(valu("v_lshrrev_b32", b, "2", L)); A(valu("v_and_b32", a, "6", b)); A(valu("v_bfe_u32", c, L, "1", "1"))
    A(valu("v_xor_b32", a, a, c)); A(valu("v_lshlrev_b32", a, "4", a)); A(valu("v_lshl_add_u32", a, b, "7", a))
    A(valu("v_and_b32", c, "1", L)); A(valu("v_lshl_add_u32", VB, c, "3", a))
    A(valu("v_lshrrev_b32", b, "3", L)); A(valu("v_xor_b32", a, d, b)); A(valu("v_lshlrev_b32", a, "4", a))
    A(valu("v_lshl_add_u32", SO, b, "9", a))
    A(valu("v_lshlrev_b32", a, "4", L)); A(valu("v_lshl_add_u32", RB, WV, "10", a))
    R(f"s_mov_b32 s34, {hex(f2u(C_LOG2E))}"); R("s_mov_b32 s35, s34")

    def run(items):
        for it in items:
            if isinstance(it, list): run(it)
            elif isinstance(it, I): A(it)
            else: it()
    def setX(k): return lambda: S.update(X=XX[k], W=WW[k], ph=k)
    def addrs(dst, base, t, xs):
        A(valu("v_add_u32", dst, str(slot(t)), base))
        for k, x in enumerate(xs): A(valu("v_xor_b32", dst + 1 + k, str(x), dst))

    def parts(h, j):
        k = KS[(h, j)]
        k = list(k) if isinstance(k, (tuple, list)) else [k]
        return k if k[-1] == 8 else k + [8]
    def acq_k(h, j, part):
        tk, tq = (h, "k", j), (h, "q", j)
        def f():
            if part == 0:
                wait_landed(8 * TI[tk] + parts(h, j)[0] - 1)
                if tq not in qread:
                    assert qbuf_free[j & 1] and TI[tq] < TI[tk]; q_emit(tq)
                barrier(); addrs(CA, KB, tk, (64,)); stamp()
            else:
                wait_landed(8 * TI[tk] + parts(h, j)[part] - 1); barrier(drain=False)
        return f
    def acq_v(h, j):
        tv = (h, "v", j)
        def f():
            wait_landed(8 * TI[tv] + 7)
            barrier(); addrs(CA, VB, tv, (32, 64, 96)); stamp()
        return f
    def k_reads(h, j, t):
        it = [ds_r128(KF + 8 * (t & 3) + 4 * kk, CA + kk, t * 2048) for kk in range(2)]
        if t == 15: it.append(lambda: pend.append((h, "k", j)))
        return it
    def v_reads(h, j, T):
        it = [ds_tr(VFB + 32 * (T & 1) + 4 * m + 2 * u, CA + T, m * 4096 + u * 2048) for m in range(8) for u in range(2)]
        if T == 3: it.append(lambda: pend.append((h, "v", j)))
        return it
    class St:
        def __init__(s): s.mf = []; s.side = {}
        def at(s, i, it): s.side.setdefault(i, []).append(it)
        def spread(s, items, first, last):
            for k, it in enumerate(items): s.at(first + (k * (last - first)) // len(items), it)
        def go(s):
            def flat(l):
                o = []
                for x in l: o += flat(x) if isinstance(x, list) else [x]
                return o
            def order(l):
                out = []
                for x in flat(l):
                    k = len(out)
                    if isinstance(x, I) and x.kind in ("dsr", "dsw"):
                        while k > 0 and isinstance(out[k-1], I) and out[k-1].kind in VAL and not (
                                (x.rd & out[k-1].wr) or (x.wr & (out[k-1].rd | out[k-1].wr))): k -= 1
                    out.insert(k, x)
                return out
            for i in sorted(k for k in s.side if k < 0): run(s.side[i])
            for i, m in enumerate(s.mf):
                A(m); tick(16); run(order(s.side.get(i, [])))
                if stress:
                    ph = S.get("ph", "qk00")
                    S["sa"] = S.get("sa", 0) + stress.get(ph, stress.get(ph[:3], stress.get("all", 0)))
                    while S["sa"] >= 1:
                        S["sa"] -= 1; S["sn"] = S.get("sn", 0) + 1
                        p.out.append(I(f"v_mul_f32 v{T2 + (S['sn'] & 1)}, v{192 + S['sn'] * 7 % 32}, v{192 + S['sn'] * 11 % 32}", "valu"))
            for i in sorted(k for k in s.side if k >= len(s.mf)):
                run(s.side[i])
    def add_qk(s, h, j, after_pv):
        b0 = len(s.mf); bq = QFB[j & 1]
        for t in range(16):
            for z in range(4):
                for kk in range(2):
                    D = SB(z) + 4 * t
                    s.mf.append(mfma16(D, KF + 8 * (t & 3) + 4 * kk, bq + 8 * z + 4 * kk, None if (j == 0 and kk == 0) else D))
        s.at(b0 - (32 if after_pv else 16), acq_k(h, j, 0))
        for pi in range(1, len(parts(h, j))): s.at(b0 + 8 * (2 * parts(h, j)[pi-1] - 2), acq_k(h, j, pi))
        for gp in (prel or {}).get((h, j), ()):
            s.at(b0 + 8 * gp, lambda gp=gp: (barrier(), release_part((h, "k", j), (gp + 2) // 2)))
        for t in range(16): s.spread(k_reads(h, j, t), b0 + 8 * (t - 2), b0 + 8 * (t - 2) + 3)
        for t in range(16): s.at(b0 + 8 * t - 1, lambda t=t: p.wait_regs(rng(KF + 8 * (t & 3), 8)))
        s.at(b0 + 127, lambda: qbuf_free.__setitem__(j & 1, True))
        s.at(b0 - 1, setX(f"qk{h}{j}"))
    def add_pv(s, h, j):
        b0 = len(s.mf); tv = (h, "v", j)
        s.at(b0 - 1 if b0 else 0, setX(f"pv{h}{j}"))
        for T in range(4):
            for z in range(4):
                acc = OACC + 4 * z
                for m in range(8):
                    s.mf.append(mfma16(acc, VFB + 32 * (T & 1) + 4 * m, PB(z) + 4 * m, None if m == 0 else acc))
                e = b0 + 32 * T + 8 * z + 7
                dst = KEEP + 6 * z + 2 * T if T < 3 else acc
                it = [valu("v_mul_f32", acc + r, RINV + z, acc + r) for r in range(4)]
                it += [valu("v_cvt_pk_bf16_f32", dst, acc, acc + 1), valu("v_cvt_pk_bf16_f32", dst + 1, acc + 2, acc + 3)]
                s.spread(it, e + 4, e + 10)
                if T == 3:
                    zo = 3 * 8192 if h == 0 else z * 8192
                    s.spread([ds_w64(CW + k, KEEP + 6 * z + 2 * k, zo) for k in range(3)], e + 5, e + 10)
                    s.at(e + 10, ds_w64(CW + 3, acc, zo))
                    if h == 0:
                        for k in range(2): s.at(e + 11 + k, ds_r128(HOLD + 32 * j + 8 * z + 4 * k, CR, (6 + k) * 4096))
                        if z == 3: s.at(e + 12, lambda: (busy.__setitem__(slot_of[tv], rng(HOLD + 32 * j, 32)), ready.add((0, j))))
                    elif zfin and j == 3:
                        def rb(z=z):
                            assert not any(x[:2] == (0, 3) for x in stq)
                            A(valu("v_add_u32", CQ, str(slot(tv)), RB))
                            for k in range(2): A(ds_r128(HOLD + 96 + 8 * z + 4 * k, CQ, (2 * z + k) * 4096))
                        s.at(e + 11, rb)
                        s.at(e + 15, lambda z=z: ready.update({(1, 3, 2 * z), (1, 3, 2 * z + 1)}))
                    elif z == 3: s.at(e + 10, lambda: o1done.add(j))
            if T == 3:
                def f():
                    assert tv in relset
                    addrs(CW, WB, tv, (32, 64, 96))
                    if h == 0: A(valu("v_add_u32", CR, str(slot(tv)), RB))
                s.at(b0 + 96 + 6, f)
                if h == 0: s.at(b0 + 64, lambda: busy.__setitem__(slot_of[tv], None))
                if h == 1 and j == 3: s.at(b0 + 96, barrier)
            if j > 0 or T > 0:
                if T == 0: s.at(b0 - 32, acq_v(h, j))
                s.spread(v_reads(h, j, T), b0 + 32 * (T - 1) + 1, b0 + 32 * (T - 1) + 25)
                s.at(b0 + 32 * T - 1, lambda T=T: p.wait_regs(rng(VFB + 32 * (T & 1), 32)))

    def vc(x): return 8 if x.kind == "trans" else 4
    def run_valu(items, extra=None):
        extra = list(extra or []); n = len(items); k = 0
        for i, x in enumerate(items):
            while k < len(extra) and k * n <= i * len(extra):
                run([extra[k]]); k += 1
            if isinstance(x, I): A(x); tick(vc(x))
            else: x()
        run(extra[k:])
    def red(op, x, t):
        return [valu("v_mov_b32", t, x), None, swap(32, x, t), valu(op, x, x, t), valu("v_mov_b32", t, x), None, swap(16, x, t), valu(op, x, x, t)]
    def ilv(*ls):
        out = []
        for k in range(max(map(len, ls))):
            out += [l[k] for l in ls if k < len(l) and l[k] is not None]
        return out
    def pk(op, dd, srcs, mods, rd): return I(f"{op} {vr(dd,2)}, " + ", ".join(srcs) + mods, "valu", rd=rd, wr=rng(dd, 2))
    def max_tile(mx, bz, t):
        r = bz + 4 * t
        if t == 0: return [valu("v_max_f32", mx, r, r + 1), valu("v_max3_f32", mx, mx, r + 2, r + 3)]
        return [valu("v_max3_f32", mx, mx, r, r + 1), valu("v_max3_f32", mx, mx, r + 2, r + 3)]
    def add_max(s):
        b0 = len(s.mf) - 128
        for t in range(16):
            for z in range(3): s.spread(max_tile(MXR[z], SB(z), t), b0 + 8 * t + 2 * z + 9, b0 + 8 * t + 2 * z + 11)
    def sm_exp(z, bz, nm):
        fm = lambda i: pk("v_pk_fma_f32", bz + i, [vr(bz + i, 2), "s[34:35]", vr(nm, 2)], " op_sel_hi:[1,1,0]", rng(bz + i, 2) | {nm})
        ex = lambda i: trans("v_exp_f32", bz + i, bz + i)
        def ad(i):
            if i == 0: return []
            if i == 2: return [pk("v_pk_add_f32", CH, [vr(bz, 2), vr(bz + 2, 2)], "", rng(bz, 4))]
            return [pk("v_pk_add_f32", CH, [vr(CH, 2), vr(bz + i, 2)], "", rng(CH, 2) | rng(bz + i, 2))]
        cv = lambda i: valu("v_cvt_pk_bf16_f32", PB(z) + i // 2, bz + i, bz + i + 1)
        it = [fm(0), fm(2), ex(0), ex(1)]
        for i in range(0, 64, 2):
            if i + 4 < 64: it.append(fm(i + 4))
            if i + 2 < 64: it.append(ex(i + 2))
            it += ad(i)
            if i + 2 < 64: it.append(ex(i + 3))
            if i == 2: it.append(cv(0))
            if i >= 2: it.append(cv(i))
        it.append(valu("v_add_f32", RINV + z, CH, CH + 1))
        return it
    def sum_fin(z): return [x for x in red("v_add_f32", RINV + z, T1) if x is not None] + [trans("v_rcp_f32", RINV + z, RINV + z)]
    NEGC = hex(f2u(-C_LOG2E))
    def softmax(h):
        setX("sm1" if h else "sm")()
        if smbar: barrier()
        run_valu(ilv(red("v_max_f32", MXR[0], T1), red("v_max_f32", MXR[1], T3), red("v_max_f32", MXR[2], CH + 3)))
        NM = (T0, T2, T0, T2)
        run_valu([valu("v_mul_f32", T0, NEGC, MXR[0]), valu("v_mul_f32", T2, NEGC, MXR[1])])
        run_valu(sm_exp(0, SB(0), T0))
        run_valu(sm_exp(1, SB(1), T2), [valu("v_mul_f32", T0, NEGC, MXR[2])] + sum_fin(0))
        body = sm_exp(2, SB(2), T0)
        run_valu(body, sum_fin(1))
        mv = []
        for t in range(16):
            mv += [accrd(TMP3 + 4 * t + r, AG + 4 * t + r) for r in range(4)]
            if t: mv += max_tile(MXR[0], TMP3, t - 1)
        mv += max_tile(MXR[0], TMP3, 15)
        run_valu(mv)
        run_valu(ilv(red("v_max_f32", MXR[0], T3), red("v_add_f32", RINV + 2, T1)))
        run_valu([valu("v_mul_f32", T2, NEGC, MXR[0]), trans("v_rcp_f32", RINV + 2, RINV + 2)])
        body = sm_exp(3, TMP3, T2)
        half = len(body) // 2
        run_valu(body[:half])
        acq_v(h, 0)()
        run_valu(body[half:-20], v_reads(h, 0, 0))
        run_valu(body[-20:])
        p.wait_lgkm(0)
        setX("pv1" if h else "pv")()

    s = St()
    for j in range(4): add_qk(s, 0, j, False)
    add_max(s)
    s.go(); stamp()
    softmax(0)
    s = St()
    s.spread(sum_fin(3), 0, 10)
    for j in range(4): add_pv(s, 0, j)
    for j in range(4): add_qk(s, 1, j, j == 0)
    add_max(s)
    s.go(); stamp()
    softmax(1)
    s = St()
    s.spread(sum_fin(3), 0, 10)
    for j in range(4): add_pv(s, 1, j)
    s.go(); stamp()
    assert S["n"] == ND
    while stq:
        st_service()
        assert store()
    if diag is not None:
        base, idx = diag
        p.wait_vm(0); barrier(); stamp()
        if idx == "min":
            R("s_load_dwordx2 s[32:33], s[0:1], 32"); p.out.append(I("s_waitcnt lgkmcnt(0)", "wait"))
            R("s_and_b32 s33, s33, 0xffff"); R("s_mov_b32 s34, 256"); R("s_mov_b32 s35, 0x20000")
            R("s_not_b32 s90, s44")
            A(valu("v_mov_b32", 6, "0")); A(valu("v_mov_b32", 7, "s90"))
            R("s_mov_b64 exec, 1")
            A(I("buffer_atomic_umax v7, v6, s[32:35], 0 offen sc1", "wait"))
            R("s_waitcnt vmcnt(0)")
            R(f"s_add_u32 s91, s44, {(base-30)*100}")
            R("L_spin0:")
            R("s_memrealtime s[92:93]"); p.out.append(I("s_waitcnt lgkmcnt(0)", "wait"))
            R("s_sub_u32 s92, s92, s91"); R("s_cmp_lt_i32 s92, 0"); R("s_cbranch_scc1 L_spin0")
            A(valu("v_mov_b32", 7, "0"))
            A(I("buffer_atomic_umax v7, v6, s[32:35], 0 offen sc0 sc1", "wait"))
            R("s_waitcnt vmcnt(0)")
            R("v_readfirstlane_b32 s90, v7"); R("s_nop 3")
            R("s_not_b32 s90, s90"); R(f"s_add_u32 s90, s90, {base*100}")
        elif idx is None: R(f"s_add_u32 s90, s44, {base*100}")
        else: R(f"s_add_u32 s90, s{44+2*(idx % nstamp[0])}, {base*100}")
        R("L_spin:")
        R("s_memrealtime s[92:93]"); p.out.append(I("s_waitcnt lgkmcnt(0)", "wait"))
        R("s_sub_u32 s92, s92, s90"); R("s_cmp_lt_i32 s92, 0"); R("s_cbranch_scc1 L_spin")
    elif stamps:
        p.wait_vm(0); barrier(); stamp()
        ns = nstamp[0]
        R("s_cmp_lg_u32 s3, 0"); R("s_cbranch_scc1 L_end")
        R("s_mov_b32 s32, s14"); R("s_and_b32 s33, s15, 0xffff"); R("s_mov_b32 s34, 0x10000000"); R("s_mov_b32 s35, 0x20000")
        R(f"s_getreg_b32 s{44+2*ns}, hwreg(HW_REG_XCC_ID)"); R(f"s_getreg_b32 s{45+2*ns}, hwreg(HW_REG_HW_ID)"); ns += 1
        R(f"s_mul_i32 s36, s2, {ns*8}")
        A(valu("v_mov_b32", 6, "0"))
        for n in range(ns):
            A(valu("v_mov_b32", 12, f"s{44+2*n}")); A(valu("v_mov_b32", 13, f"s{45+2*n}"))
            A(I(f"buffer_store_dwordx2 v[12:13], v6, s[32:35], s36 offen offset:{n*8}", "store", rd={12, 13, 6}))
    src = HDR + "; @launch grid=(256,1,1) block=(256,1,1) lds=163840\n"
    src += '.amdgcn_target "amdgcn-amd-amdhsa--gfx950"\n.text\n' + f".globl {KN}\n.p2align 8\n.type {KN},@function\n{KN}:\n"
    src += p.text() + "\nL_end:\ns_endpgm\n"
    src += f""".section .rodata,"a"
.p2align 6
.amdhsa_kernel {KN}
  .amdhsa_next_free_vgpr 512
  .amdhsa_next_free_sgpr 102
  .amdhsa_accum_offset 256
  .amdhsa_group_segment_fixed_size 0
  .amdhsa_kernarg_size 48
  .amdhsa_user_sgpr_count 2
  .amdhsa_user_sgpr_kernarg_segment_ptr 1
  .amdhsa_system_sgpr_workgroup_id_x 1
.end_amdhsa_kernel
"""
    return src, f"stamps {nstamp[0]} instrs {len(p.out)} nops {p.nops}/{p.nopstates} skips {S['skips']} slots " + "".join(str(x) for x in slot_of.values()) + "\n     " + " ".join(log)

from base import *
if __name__ == "__main__":
    V = eval(open(sys.argv[1]).read())
    for n, kw in V.items():
        s, info = gen(**kw)
        open(n + ".s", "w").write(s)
        print(n, info)
    print(" ".join(n + ".s" for n in V))
    print(json.dumps(["work/icscrub.s", "work/sens.sh", "work/idle100.s", "work/k_br.s", "work/bench.py", "cdna_kernels/cdna_launch.py", "cdna_kernels/cdna_unwritten_srd_check.py", "work/scrub_read.s"] + ["work/" + n + ".s" for n in V]))
```

```python
ORD = "q0 k0 q1 k1 q2 k2 q3 k3 v0 v1 v2 v3 q01 q11 k01 k11 q21 q31 k21 k31 v01 v11 v21 v31"
def B(X=None, **kw):
    x = dict(pv=160, qk1=160, qk3=208, pv10=128, pv11=136, pv12=152, pv13=160); x.update(X or {})
    d = dict(X=x, ipf=2, stdelay=3000, order=ORD); d.update(kw)
    return d

def B1(X=None, Wp=None, **kw):
    w = dict(qk0=5); w.update(Wp or {})
    return B(X=X, Wp=w, **kw)

def B2(X=None, **kw):
    x = dict(pv=153, qk10=164, qk11=164, qk12=164, qk13=128); x.update(X or {})
    d = dict(ksp={(1,0):8,(1,1):8,(1,2):8,(1,3):8}, prel={(1,0):(6,10), (1,1):(8,)}); d.update(kw)
    return B1(X=x, **d)
def T(a, b, c, d): return dict(pv10=a, pv11=b, pv12=c, pv13=d)
def B3(X=None, **kw):
    x = dict(T(120, 124, 176, 232), sm1=220); x.update(X or {})
    d = dict(stdelay=3500); d.update(kw)
    return B2(X=x, **d)
def B4(X=None, **kw):
    x = T(124,128,176,232); x.update(X or {})
    d = dict(stdelay=3200); d.update(kw)
    return B3(X=x, **d)
def B5(X=None, **kw):
    x = dict(pv12=168, pv13=200, qk3=192); x.update(X or {})
    d = dict(smbar=False, stdelay=3400, xfin=(108, 32), wsr=[(56, 8), (64, 16)]); d.update(kw)
    return B4(X=x, **d)
G = (0x9E3779B1, 8, 0x1F000)
def M(bits, **kw):
    d = dict(kvb=bits, qob=bits); d.update(kw)
    return B5(**d)
J = (15,16,12,13,14)
G2 = (0xC2B2AE35, 12, 0x1F000)
GA = (0x9E3779B1, 8, 0x1FE00)
def B6(**kw):
    d = dict(xm=G); d.update(kw)
    return M(J, **d)
def B7(X=None, Wp=None, **kw):
    x = dict(sm=235, pv=155); x.update(X or {})
    w = dict(sm=6, qk3=6); w.update(Wp or {})
    d = dict(W=5, stdelay=3000); d.update(kw)
    return B6(X=x, Wp=w, **d)
def WS_(a, sm, b):
    d = {f"qk0{j}": a[j] for j in range(4)}; d["qk0"] = a[0]; d["sm"] = sm
    d.update({f"pv0{j}": b[j] for j in range(4)}); d.update({f"qk1{j}": b[4 + j] for j in range(4)})
    return d
def B8(**kw):
    d = dict(wlast=(48, 7), stdelay=3300); d.update(kw)
    return B7(**d)
def B9(X=None, Wp=None, **kw):
    x = dict(qk3=184, pv=153); x.update(X or {})
    w = dict(qk3=5); w.update(Wp or {})
    d = dict(stdelay=3100, prel={(1,0):(6,10), (1,1):(6,)}); d.update(kw)
    return B7(X=x, Wp=w, **d)
def N(ib, rest, **kw):
    d = dict(kvb=rest, qob=rest, ib=ib, xm=GA); d.update(kw)
    return B9(**d)
def B10(X=None, **kw):
    x = dict(qk13=112); x.update(X or {})
    d = dict(stdelay=3300); d.update(kw)
    return N(d.pop("ib", (9,15,16)), (10,11,13,14,12), X=x, **d)
H0 = "q0 k0 q1 k1 q2 k2 q3 k3 "
HI = "q0 k0+q1 k1+q2 k2+q3 k3 "
T2_ = "v0 q01 v1 k01 v2 q11 v3 k11 v01 q21 k21 v11 q31 k31 v21 v31"
KI = {(0,0):(2,4,6),(0,1):(2,4,6),(0,2):(2,4,6),(1,0):8,(1,1):8,(1,2):8,(1,3):8}
def B11(**kw):
    d = dict(order=H0 + T2_); d.update(kw)
    return B10(**d)
def B12(X=None, **kw):
    x = dict(qk00=110, qk01=118, qk02=152); x.update(X or {})
    d = dict(ksp={(0,0):(1,3),(1,0):8,(1,1):8,(1,2):8,(1,3):8}); d.update(kw)
    return B11(X=x, **d)
def B13(X=None, **kw):
    x = dict(T(120,124,172,200), qk02=144, qk03=176, pv=156); x.update(X or {})
    return B12(X=x, **kw)
def mix(n, **w):
    tot = sum(w.values()); assert tot == n
    acc = {k: 0.0 for k in w}; out = []
    for _ in range(n):
        for k in w: acc[k] += w[k] / n
        k = max(acc, key=lambda x: acc[x]); acc[k] -= 1; out.append(k)
    return "".join(out)
F_ALL = "q" * 8 + mix(184, q=56, k=64, v=64)
F_A = "q" * 8 + mix(48, k=24, q=24) + "k" * 8 + mix(56, v=32, q=12, k=12) + mix(56, v=16, q=20, k=20) + "v" * 16
F_B = "q" * 8 + mix(48, k=24, q=24) + mix(16, k=8, q=4, v=4) + mix(48, v=28, q=8, k=12) + mix(58, v=18, q=20, k=20) + "v" * 14
F_C = "qqqqqqqqkkkkkkkk" * 4 + mix(56, v=32, q=12, k=12) + mix(56, v=16, q=20, k=20) + "v" * 16
F_D = "q" * 8 + "kkqq" * 12 + "k" * 8 + "".join(c * 2 for c in mix(28, v=16, q=6, k=6) + mix(28, v=8, q=10, k=10)) + "v" * 16
F_E = "q" * 8 + "kkkkqqqq" * 6 + "k" * 8 + "".join(c * 4 for c in mix(14, v=8, q=3, k=3) + mix(14, v=4, q=5, k=5)) + "v" * 16
```

```python
import sys, json, math, struct
from asmfw3 import *
KN = "standalone__mha_softmax__near_ridge_kernel"

HDR = """; Fused attention  out = softmax(Q K^T / 16) V,  B*H = 512 heads, Sq = Sk = D = 256, bf16 in/out, fp32 accumulation.
; (Straight-line code emitted by a generator script written for this kernel.)
;
;                LDS row <-> memory row is a per-workgroup bit permutation (same for K and V, same for Q and out),
; PV           : O^T = V^T P^T, V fragments by ds_read_b64_tr_b16, 8-deep accumulation chains, scaled by 1/sum in fp32.
; Output       : transposed through LDS into full 128-byte rows.  Head 0's output waits in AGPRs; all stores are
;                issued after the last load so HBM sees one read phase and one write phase.
; Registers    : v0-191 S (q blocks 0-2) / P / O tiles, v192-223 Q fragments, v224-255 addresses and scalars,
"""
def SB(z): return 64 * z if z < 3 else AG
def PB(z): return 32 * z
TMP3 = 128; OACC = 176; KEEP = 152
QFB = (192, AG + 64); KF = AG + 96; VFB = AG; HOLD = AG + 128
DL, KB, QB, VB, WB, RB, SO = range(224, 231)
CA = 232; CQ = 236; CW = 238; CR = 242; RINV = 244; T0 = 248; T1 = 249; CH = 250; T2 = 254; T3 = 255; MXR = (231, 243, 242, 237)
SRD = {"q": 16, "k": 20, "v": 24, "o": 28}
C_LOG2E = math.log2(math.e) / 16.0
def f2u(x): return struct.unpack("<I", struct.pack("<f", x))[0]
XDEF = dict(qk0=128, qk3=160, sm=250, pv=176, qk1=150, sm1=250, pv1=140)

def gen(W=6, WS=8, X=None, ld="nt", st="sc1", stamps=False, diag=None, cyc=0, nomem=False,
        qpos=(1, 3), ks=3, stdelay=0, Wp=None, smbar=True, ipf=4, ipfpol='', rot=None, hmap=0, wlast=None, wsr=None, st0=None, st1=None, tlb=False, ksp=None, zfin=True, order=None, w0=None, ipfearly=True, stress=None, trickle=None, prel=None, z3=1, pst=False, stx=None, plain=(), nopf=0, xfin=None, xm=None, ib=(9, 10, 11), kvb=(12, 13, 14, 15, 16), qob=(15, 16, 12, 13, 14), xw=None, xm2=None, sord=0, wsch=None, wse=None, drain=0, fake=None, saw=None):
    assert sorted(ib + kvb) == sorted(ib + qob) == list(range(9, 17))
    def scat(v, bits): return sum(((v >> k) & 1) << b_ for k, b_ in enumerate(bits))
    XX = dict(XDEF); XX.update(X or {})
    WW = {k: W for k in XX}; WW.update(Wp or {})
    for D_ in (XX, WW):
        for j in range(4):
            D_.setdefault(f"qk0{j}", D_["qk3" if j == 3 else "qk0"]); D_.setdefault(f"qk1{j}", D_["qk1"])
            D_.setdefault(f"pv0{j}", D_["pv"]); D_.setdefault(f"pv1{j}", D_["pv1"])
    KS = {(h, j): ks for h in range(2) for j in range(4)}; KS.update(ksp or {})
    p = Prog(); R = p.raw; A = p.add
    nstamp = [0]
    log = []
    def stamp():
        try: log.append(f"{S['n'] + 64 - len(stq)}/{S['skips']}")
        except NameError: pass
        if stamps and not (pst and 5 < nstamp[0] and not S.get("fin")):
            R(f"{'s_memtime' if cyc == 1 else 's_memrealtime'} s[{44+2*nstamp[0]}:{45+2*nstamp[0]}]")
            if cyc == 2: R("s_memtime s[94:95]")
            p.out.append(I("s_waitcnt lgkmcnt(0)", "wait")); p.lds_q = []
            if cyc == 2: R(f"s_mov_b32 s{45+2*nstamp[0]}, s94")
            nstamp[0] += 1
    stamp()
    R("s_load_dwordx8 s[4:11], s[0:1], 0")
    R("s_cmp_ge_u32 s2, 256"); R("s_cbranch_scc1 L_end")
    if stamps: R("s_load_dwordx2 s[14:15], s[0:1], 40")
    WV, L = T0, T1
    a, b, c, d = CH, CH + 1, CH + 2, CH + 3
    A(valu("v_lshrrev_b32", WV, "6", 0))
    A(valu("v_and_b32", L, "63", 0))
    A(I(f"v_readfirstlane_b32 s3, v{WV}", "rfl", rd={WV}))
    A(valu("v_lshrrev_b32", b, "3", L)); A(valu("v_and_b32", a, "6", b)); A(valu("v_and_b32", c, "7", L))
    A(valu("v_xor_b32", a, a, c)); A(valu("v_lshlrev_b32", a, "4", a))
    def lane_rows(dst, acc, i, t):
        if ib[1] == ib[0] + 1 and ib[2] == ib[0] + 2: A(valu("v_lshl_add_u32", dst, i, str(ib[0]), acc)); return
        for k in range(3):
            A(valu("v_bfe_u32", t, i, str(k), "1")); A(valu("v_lshl_add_u32", dst if k == 2 else acc, t, str(ib[k]), acc))
    lane_rows(DL, a, b, c)
    if hmap in (2, 3):
        R("s_and_b32 s37, s2, 7"); R("s_lshl_b32 s37, s37, 5"); R("s_lshr_b32 s36, s2, 3"); R("s_or_b32 s37, s37, s36")
        R(f"s_lshl_b32 s37, s37, {18 if hmap == 3 else 17}")
    else: R(f"s_lshl_b32 s37, s2, {18 if hmap else 17}")
    R("s_lshl_b32 s39, s3, 10")
    if rot is not None:
        R(f"s_lshr_b32 s36, s2, {rot}"); R("s_and_b32 s36, s36, 3"); R("s_lshl_b32 s36, s36, 7"); R("s_or_b32 s37, s37, s36")
    for dst, bits in (("s40", qob), ("s42", kvb)):
        if bits[1] == bits[0] + 1: R(f"s_lshl_b32 s36, s3, {bits[0]}"); R(f"s_add_u32 {dst}, s37, s36")
        else:
            R("s_and_b32 s36, s3, 1"); R(f"s_lshl_b32 s36, s36, {bits[0]}"); R(f"s_add_u32 {dst}, s37, s36")
            R("s_lshr_b32 s36, s3, 1"); R(f"s_lshl_b32 s36, s36, {bits[1]}"); R(f"s_add_u32 {dst}, {dst}, s36")
    if xm:
        R(f"s_mul_i32 s36, s2, {hex(xm[0])}"); R(f"s_lshr_b32 s36, s36, {xm[1]}"); R(f"s_and_b32 s36, s36, {hex(xm[2] & ~scat(7, ib))}")
        R("s_xor_b32 s40, s40, s36"); R("s_xor_b32 s42, s42, s36")
    if xm2:
        R(f"s_mul_i32 s36, s2, {hex(xm2[0])}"); R(f"s_lshr_b32 s36, s36, {xm2[1]}"); R(f"s_and_b32 s36, s36, {hex(xm2[2] & ~scat(7, ib))}")
        R("s_xor_b32 s42, s42, s36")
    if xw:
        assert kvb == qob
        if xw[0] == "lin": R(f"s_mul_i32 s36, s3, {hex(xw[1])}")
        else:
            R("s_lshl_b32 s36, s2, 2"); R("s_add_u32 s36, s36, s3"); R(f"s_mul_i32 s36, s36, {hex(xw[1])}"); R(f"s_lshr_b32 s36, s36, {xw[2]}")
        R(f"s_and_b32 s36, s36, {hex(scat(7, qob[2:]))}")
        R("s_xor_b32 s40, s40, s36"); R("s_xor_b32 s42, s42, s36")
    def code_prefetch():
        nl = ipf * 8; sh = (ipf * 1024).bit_length() - 1
        p.out.append(I("; touch this kernel's code lines once (2 KiB per workgroup) so later instruction fetches hit L2", "cmt", states=0))
        R("s_getpc_b64 s[12:13]"); R("L_pc:")
        R("s_lshr_b32 s36, s2, 3"); R(f"s_and_b32 s36, s36, {64 // ipf - 1}")
        if nopf: R(f"s_lshr_b32 s38, {hex(nopf)}, s36"); R("s_and_b32 s38, s38, 1"); R("s_cselect_b32 s36, 0, s36")
        R(f"s_lshl_b32 s36, s36, {sh}")
        A(valu("v_and_b32", a, str(nl - 1), 0))
        A(valu("v_lshl_add_u32", a, a, "7", "s36"))
        A(valu("v_min_u32", a, "L_end-L_pc", a))
        A(valu("v_mov_b32", b, "s13"))
        A(I(f"v_add_co_u32 v{a}, vcc, s12, v{a}", "valu", rd={a}, wr={a}))
        R("s_cmp_lg_u32 s3, 3"); R("s_nop 0")
        A(I(f"v_addc_co_u32 v{b}, vcc, 0, v{b}, vcc", "valu", rd={b}, wr={b}))
        R("s_cbranch_scc1 L_nopf")
        A(I(f"global_load_dword v{T3}, v[{a}:{b}], off {ipfpol}", "wait", rd={a, b}, wr={T3}))
        R("L_nopf:")
    if ipf and ipfearly: code_prefetch()
    p.out.append(I("s_waitcnt lgkmcnt(0)", "wait"))
    def srd(nm, ptr):
        s = SRD[nm]
        R(f"s_mov_b32 s{s}, s{ptr}"); R(f"s_and_b32 s{s+1}, s{ptr+1}, 0xffff"); R(f"s_mov_b32 s{s+2}, 0x4000000"); R(f"s_mov_b32 s{s+3}, 0x20000")
    if pst: stamp()
    first_k = bool(order) and order[0] == "k"
    srd(*(("k", 6) if first_k else ("q", 4)))

    tiles = []
    for j in range(4): tiles += [(0, "q", j), (0, "k", j)]
    vs = [(0, "v", j) for j in range(4)] + [(1, "k", 0)]
    for k, pos in enumerate(qpos): vs.insert(pos, (1, "q", k))
    tiles += vs
    for j in range(1, 4):
        if j >= len(qpos): tiles.append((1, "q", j))
        tiles.append((1, "k", j))
    tiles += [(1, "v", j) for j in range(4)]
    if order:
        tl = lambda x: (int(x[2]) if len(x) > 2 else 0, x[0], int(x[1]))
        groups = [[tl(x) for x in gr.split("+")] for gr in order.split()]
        tiles = [t for gr in groups for t in gr]
        assert len(set(tiles)) == 24
    NT = len(tiles); assert NT == 24
    TI = {t: i for i, t in enumerate(tiles)}; ND = NT * 8
    SEQ = [(t, j) for gr in (groups if order else [[t] for t in tiles]) for j in range(8) for t in gr]
    IX = {x: n for n, x in enumerate(SEQ)}
    XT = (1, "k", 3)
    free = [0, 1, 2, 3, 4]; slot_of = {}; pend = []; relset = set(); avail = {k: 8 for k in range(5)}; partial = set()
    def slot(t): return slot_of[t] * 32768
    def release(t):
        relset.add(t)
        if t[:2] == (1, "v"): return
        avail[slot_of[t]] = 8
        if t not in partial: free.append(slot_of[t])
    def release_part(t, n):
        avail[slot_of[t]] = n
        if t not in partial: partial.add(t); free.append(slot_of[t])
    def barrier(drain=True):
        if drain: p.wait_lgkm(0)
        p.out.append(I("s_barrier", "bar"))
        if drain:
            for t in pend: release(t)
            pend.clear()
    S = {"n": 0, "acc": 0.0, "X": XX["qk0"], "W": WW["qk0"], "skips": 0}
    busy = {}
    def wait_loads(k):
        li = [i for i, t in enumerate(p.vm_q) if t[0] == "L"]
        if len(li) <= k or li[-k - 1] < p.vm_done: return
        p.out.append(I(f"s_waitcnt vmcnt({k})", "wait"))
        p.vm_done = max(p.vm_done, li[-k - 1] + 1)
    def dma(must=True):
        n = S["n"]; t, j = SEQ[n]; ti = TI[t]
        h, m, db = t
        if j == 0:
            if not free:
                assert not must, ("no free slot", t)
                return False
            slot_of[t] = free.pop(0)
        if j >= avail[slot_of[t]]:
            assert not must, "piece not released"
            return False
        if j >= 6 and slot_of[t] in busy:
            regs = busy[slot_of[t]]
            if regs is None:
                assert not must, "staging in progress"
                return False
            if p.lds_pending(regs): p.wait_lgkm(0)
            del busy[slot_of[t]]
        jj = j
        if fake:
            m = fake[n]; c_ = fake[:n].count(m); h, db, jj = c_ // 32, (c_ // 8) % 4, c_ % 8
        if m == "q": R(f"s_xor_b32 s96, s{40+h}, {db*128 + scat(jj, qob[2:])}")
        else: R(f"s_xor_b32 s96, s{42+h}, {db*128 + scat(jj, kvb[2:])}")
        A(salu(f"s_add_u32 m0, s39, {slot(t) + j*4096}", tag="m0"))
        wf = S['W']
        for n0, w_ in (wsch or []):
            if n >= n0: wf = w_
        wi = int(wf) + (1 if int((n + 1) * (wf % 1)) > int(n * (wf % 1)) else 0)
        if saw and n >= wi: wi += saw[SEQ[n - wi][1]]
        wait_loads((wlast[1] if wlast and n >= ND - wlast[0] else (max(wi, w0[1] - max(0, n - w0[0])) if w0 else wi)) - 1)
        if nomem and ti >= 5: A(I("s_nop 0", "dma", rd={DL}, tag=("L", n)))
        else: A(I(f"buffer_load_dwordx4 v{DL}, s[{SRD[m]}:{SRD[m]+3}], s96 offen {ld} lds", "dma", rd={DL}, tag=("L", n)))
        S["n"] += 1
        if trickle and S["n"] >= trickle[0] and (S["n"] - trickle[0]) % trickle[1] == 0 and S["n"] < trickle[2]: store(early=True)
        return True
    qtodo = [t for t in tiles if t[1] == "q"]; qbuf_free = [True, True]; qread = set(); qrel = []
    def q_emit(t):
        assert not S.get("mx3live")
        bq = QFB[t[2] & 1]
        A(valu("v_add_u32", CQ, str(slot(t)), QB)); A(valu("v_xor_b32", CQ + 1, "64", CQ))
        for z in range(4):
            for kk in range(2): A(ds_r128(bq + 8 * z + 4 * kk, CQ + kk, z * 8192))
        qbuf_free[t[2] & 1] = False; qread.add(t); qrel.append([t, 0]); qtodo.remove(t)
    def q_service(cost):
        for e in list(qrel):
            e[1] += cost
            regs = rng(QFB[e[0][2] & 1], 32)
            if p.lds_pending(regs) and e[1] > 400: p.wait_lgkm(0)
            if not p.lds_pending(regs): release(e[0]); qrel.remove(e)
        if qtodo:
            t = qtodo[0]
            if qbuf_free[t[2] & 1] and p.landed(("L", IX[(t, 7)])): q_emit(t)
    stq = [(h, db, s) for h in range(2) for db in range(4) for s in range(8)]
    if sord == 1: stq[:32] = [(0, db, s) for s in range(8) for db in range(4)]
    if sord == 2: stq[:32] = [(0, 2 * hf + d, s) for hf in range(2) for s in range(8) for d in range(2)]
    if sord == 3: stq[:32] = [(0, (k + k // 8) % 4, k % 8) for k in range(32)]
    assert len(set(stq)) == 64
    ready = set(); o1done = set(); stg = {j: (1, "v", j) for j in range(4)}
    def readback(t, db):
        A(valu("v_add_u32", CR, str(slot(t)), RB))
        for s in range(8): A(ds_r128(HOLD + 32 * db + 4 * s, CR, s * 4096))
    def st_service():
        for db in sorted(o1done):
            if (1, db) not in ready and not any(x[:2] == (0, db) for x in stq):
                readback(stg[db], db); ready.add((1, db)); return
    def store(early=False):
        h, db, s = stq[0]
        if (h, db) not in ready and (h, db, s) not in ready: return False
        stq.pop(0)
        R(f"s_xor_b32 s97, s{40+h}, {db*128 + scat(s, qob[2:])}")
        k = 63 - len(stq)
        ws = WS
        for lim, w_ in (wsr or []):
            if k < lim: ws = w_; break
        if not early:
            if not S.get("drained"): p.wait_vm(0); S["drained"] = True
            if ws: p.wait_vm(ws - 1)
            if wse and wse[1] <= k < wse[2]:
                wi = int(wse[0]) + (1 if int((k + 1) * (wse[0] % 1)) > int(k * (wse[0] % 1)) else 0)
                R(f"s_cbranch_vccnz L_w{k}")
                p.out.append(I(f"s_waitcnt vmcnt({wi-1})", "wait", states=0)); p.out.append(I(f"L_w{k}:", "cmt", states=0))
        pol = st0[1] if st0 and k < st0[0] else (st1[1] if st1 and k >= 64 - st1[0] else st)
        reg = HOLD + 32 * db + 4 * s
        if nomem: return True
        A(I(f"buffer_store_dwordx4 {vr(reg,4)}, v{SO}, s[28:31], s97 offen {pol}", "store", rd=rng(reg, 4) | {SO}, tag=("S", h, db, s)))
        return True
    def tick(cost):
        q_service(cost); st_service()
        S["acc"] += cost
        if S["acc"] >= S["X"]:
            if S["n"] < ND:
                ok = dma(must=False)
                if ok and wsch and any(S["n"] == n0 for n0, _ in wsch): dma(must=False)
                if ok and S["n"] == ND and not drain: S["acc"] -= stdelay
            elif S.get("dr", 0) < drain:
                S["dr"] = S.get("dr", 0) + 1
                wait_loads(int(wsch[-1][1]) - S["dr"]); ok = True
                if S["dr"] == drain: S["acc"] -= stdelay
            else:
                ok = bool(stq) and store()
                if ok and stx and 64 - len(stq) <= stx[0]: S["acc"] -= stx[1]
            if ok: S["acc"] -= S["X"]
            else: S["skips"] += 1
            S["acc"] = min(S["acc"], S["X"] + 32)
    def wait_landed(n):
        W = int(S["W"])
        forced = S["n"] <= n + W - 1
        while S["n"] <= n:
            dma(); q_service(0)
        while S["n"] < min(n + W, ND) and dma(must=False): q_service(0)
        wait_loads(S["n"] - 1 - n)
        if forced and S["n"] < ND:
            dma(must=False); S["acc"] = 0
    for _ in range(min(8, w0[1] if w0 else int(S['W']))): dma()
    if pst: stamp()
    srd(*(("q", 4) if first_k else ("k", 6)))
    while w0 and S["n"] < w0[1]: dma()
    if ipf and not ipfearly: code_prefetch()
    srd("v", 8); srd("o", 10)
    R(f"s_add_u32 s41, s40, {0x20000 if hmap in (1, 3) else 0x2000000}"); R(f"s_add_u32 s43, s42, {0x20000 if hmap in (1, 3) else 0x2000000}")
    if tlb:
        A(valu("v_lshlrev_b32", a, "25", L)); A(valu("v_and_b32", a, "0x2000000", a))
        R("s_cmp_lg_u32 s3, 2"); R("s_cbranch_scc1 L_notlb")
        R("s_mov_b64 exec, 3")
        for nm in ("k", "v", "o", "q"):
            A(I(f"buffer_load_dword v{T3}, v{a}, s[{SRD[nm]}:{SRD[nm]+3}], s40 offen nt", "wait", rd={a}, wr={T3}))
        R("s_mov_b64 exec, -1")
        R("L_notlb:")
    A(valu("v_lshrrev_b32", c, "4", L))
    A(valu("v_and_b32", a, "6", L)); A(valu("v_xor_b32", a, a, c)); A(valu("v_lshlrev_b32", a, "4", a))
    A(valu("v_and_b32", b, "15", L)); A(valu("v_lshl_add_u32", KB, b, "7", a))
    A(valu("v_bfe_u32", b, L, "3", "1")); A(valu("v_lshlrev_b32", b, "12", b))
    A(valu("v_and_b32", d, "7", L)); A(valu("v_lshl_add_u32", b, d, "7", b)); A(valu("v_lshl_add_u32", b, WV, "10", b))
    A(valu("v_add_u32", QB, a, b))
    A(valu("v_lshrrev_b32", a, "1", c)); A(valu("v_xor_b32", a, a, d)); A(valu("v_lshl_add_u32", b, a, "4", b))
    A(valu("v_and_b32", a, "1", c)); A(valu("v_lshl_add_u32", WB, a, "3", b))
    A(valu("v_lshrrev_b32", b, "2", L)); A(valu("v_and_b32", a, "6", b)); A(valu("v_bfe_u32", c, L, "1", "1"))
    A(valu("v_xor_b32", a, a, c)); A(valu("v_lshlrev_b32", a, "4", a)); A(valu("v_lshl_add_u32", a, b, "7", a))
    A(valu("v_and_b32", c, "1", L)); A(valu("v_lshl_add_u32", VB, c, "3", a))
    A(valu("v_lshrrev_b32", b, "3", L)); A(valu("v_xor_b32", a, d, b)); A(valu("v_lshlrev_b32", a, "4", a))
    lane_rows(SO, a, b, c)
    A(valu("v_lshlrev_b32", a, "4", L)); A(valu("v_lshl_add_u32", RB, WV, "10", a))
    R(f"s_mov_b32 s34, {hex(f2u(C_LOG2E))}"); R("s_mov_b32 s35, s34")
    if wse:
        p.out.append(I("; vcc = odd compute die (even dies win write arbitration, so they keep fewer stores in flight)", "cmt", states=0))
        R("s_getreg_b32 s36, hwreg(HW_REG_XCC_ID)"); R("s_and_b32 s36, s36, 1"); R("s_cselect_b64 vcc, -1, 0")

    if pst:
        stamp(); p.out.append(I(f"s_waitcnt vmcnt({int(S['W'])-1})", "wait")); stamp()
    def run(items):
        for it in items:
            if isinstance(it, list): run(it)
            elif isinstance(it, I): A(it)
            else: it()
    NAMES = dict(qk="S^T += K Q^T, head {h}, d block {j}", pv="O^T = V^T P^T, head {h}, d block {j}")
    def setX(k):
        def f():
            S.update(X=XX[k], W=WW[k], ph=k)
            if len(k) == 4: p.out.append(I("; ---- " + NAMES[k[:2]].format(h=k[2], j=k[3]), "cmt", states=0))
            elif k[:2] == "sm": p.out.append(I("; ---- softmax, head " + (k[2:] or "0"), "cmt", states=0))
        return f
    def addrs(dst, base, t, xs):
        A(valu("v_add_u32", dst, str(slot(t)), base))
        for k, x in enumerate(xs): A(valu("v_xor_b32", dst + 1 + k, str(x), dst))

    def parts(h, j):
        k = KS[(h, j)]
        k = list(k) if isinstance(k, (tuple, list)) else [k]
        return k if k[-1] == 8 else k + [8]
    def acq_k(h, j, part):
        tk, tq = (h, "k", j), (h, "q", j)
        def f():
            if part == 0:
                wait_landed(IX[(tk, parts(h, j)[0] - 1)])
                if tq not in qread:
                    assert qbuf_free[j & 1]; wait_landed(IX[(tq, 7)])
                    if tq not in qread: q_emit(tq)
                barrier(); addrs(CA, KB, tk, (64,)); stamp()
            else:
                wait_landed(IX[(tk, parts(h, j)[part] - 1)]); barrier(drain=False)
        return f
    def acq_v(h, j):
        tv = (h, "v", j)
        def f():
            wait_landed(IX[(tv, 7)])
            barrier(); addrs(CA, VB, tv, (32, 64, 96)); stamp()
        return f
    def k_reads(h, j, t):
        it = [ds_r128(KF + 8 * (t & 3) + 4 * kk, CA + kk, t * 2048) for kk in range(2)]
        if t == 15: it.append(lambda: pend.append((h, "k", j)))
        return it
    def v_reads(h, j, T):
        it = [ds_tr(VFB + 32 * (T & 1) + 4 * m + 2 * u, CA + T, m * 4096 + u * 2048) for m in range(8) for u in range(2)]
        if T == 3: it.append(lambda: pend.append((h, "v", j)))
        return it
    class St:
        def __init__(s): s.mf = []; s.side = {}
        def at(s, i, it): s.side.setdefault(i, []).append(it)
        def spread(s, items, first, last):
            for k, it in enumerate(items): s.at(first + (k * (last - first)) // len(items), it)
        def go(s):
            def flat(l):
                o = []
                for x in l: o += flat(x) if isinstance(x, list) else [x]
                return o
            def order(l):
                out = []
                for x in flat(l):
                    k = len(out)
                    if isinstance(x, I) and x.kind in ("dsr", "dsw"):
                        while k > 0 and isinstance(out[k-1], I) and out[k-1].kind in VAL and not (
                                (x.rd & out[k-1].wr) or (x.wr & (out[k-1].rd | out[k-1].wr))): k -= 1
                    out.insert(k, x)
                return out
            for i in sorted(k for k in s.side if k < 0): run(s.side[i])
            for i, m in enumerate(s.mf):
                A(m)
                if S.get('ph', 'qk00')[:3] in plain: run(s.side.get(i, [])); tick(16)
                else: tick(16); run(order(s.side.get(i, [])))
                if stress:
                    ph = S.get("ph", "qk00")
                    S["sa"] = S.get("sa", 0) + stress.get(ph, stress.get(ph[:3], stress.get("all", 0)))
                    while S["sa"] >= 1:
                        S["sa"] -= 1; S["sn"] = S.get("sn", 0) + 1
                        p.out.append(I(f"v_mul_f32 v{T2 + (S['sn'] & 1)}, v{192 + S['sn'] * 7 % 32}, v{192 + S['sn'] * 11 % 32}", "valu"))
            for i in sorted(k for k in s.side if k >= len(s.mf)):
                run(s.side[i])
    def add_qk(s, h, j, after_pv):
        b0 = len(s.mf); bq = QFB[j & 1]
        for t in range(16):
            for z in range(4):
                for kk in range(2):
                    D = SB(z) + 4 * t
                    s.mf.append(mfma16(D, KF + 8 * (t & 3) + 4 * kk, bq + 8 * z + 4 * kk, None if (j == 0 and kk == 0) else D))
        s.at(b0 - (32 if after_pv else 16), acq_k(h, j, 0))
        for pi in range(1, len(parts(h, j))): s.at(b0 + 8 * (2 * parts(h, j)[pi-1] - 2), acq_k(h, j, pi))
        for gp in (prel or {}).get((h, j), ()):
            s.at(b0 + 8 * gp, lambda gp=gp: (barrier(), release_part((h, "k", j), (gp + 2) // 2)))
        for t in range(16): s.spread(k_reads(h, j, t), b0 + 8 * (t - 2), b0 + 8 * (t - 2) + 3)
        for t in range(16): s.at(b0 + 8 * t - 1, lambda t=t: p.wait_regs(rng(KF + 8 * (t & 3), 8)))
        if not (z3 and j == 2): s.at(b0 + 127, lambda: qbuf_free.__setitem__(j & 1, True))
        s.at(b0 - 1, setX(f"qk{h}{j}"))
    def add_pv(s, h, j):
        b0 = len(s.mf); tv = (h, "v", j)
        s.at(b0 - 1 if b0 else 0, setX(f"pv{h}{j}"))
        for T in range(4):
            for z in range(4):
                acc = OACC + 4 * z
                for m in range(8):
                    s.mf.append(mfma16(acc, VFB + 32 * (T & 1) + 4 * m, PB(z) + 4 * m, None if m == 0 else acc))
                e = b0 + 32 * T + 8 * z + 7
                dst = KEEP + 6 * z + 2 * T if T < 3 else acc
                it = [valu("v_mul_f32", acc + r, RINV + z, acc + r) for r in range(4)]
                it += [valu("v_cvt_pk_bf16_f32", dst, acc, acc + 1), valu("v_cvt_pk_bf16_f32", dst + 1, acc + 2, acc + 3)]
                s.spread(it, e + 4, e + 10)
                if T == 3:
                    zo = 3 * 8192 if h == 0 else z * 8192
                    s.spread([ds_w64(CW + k, KEEP + 6 * z + 2 * k, zo) for k in range(3)], e + 5, e + 10)
                    s.at(e + 10, ds_w64(CW + 3, acc, zo))
                    if h == 0:
                        for k in range(2): s.at(e + 11 + k, ds_r128(HOLD + 32 * j + 8 * z + 4 * k, CR, (6 + k) * 4096))
                        if z == 3: s.at(e + 12, lambda: (busy.__setitem__(slot_of[tv], rng(HOLD + 32 * j, 32)), ready.add((0, j))))
                    elif zfin and j == 3:
                        def rb(z=z):
                            assert not any(x[:2] == (0, 3) for x in stq)
                            A(valu("v_add_u32", CQ, str(slot(tv)), RB))
                            for k in range(2): A(ds_r128(HOLD + 96 + 8 * z + 4 * k, CQ, (2 * z + k) * 4096))
                        s.at(e + 11, rb)
                        s.at(e + (13 if xfin else 15), lambda z=z: ready.update({(1, 3, 2 * z), (1, 3, 2 * z + 1)}))
                    elif z == 3: s.at(e + 10, lambda: o1done.add(j))
            if T == 3:
                def f():
                    assert tv in relset
                    addrs(CW, WB, tv, (32, 64, 96))
                    if h == 0: A(valu("v_add_u32", CR, str(slot(tv)), RB))
                s.at(b0 + 96 + 6, f)
                if h == 0: s.at(b0 + 64, lambda: busy.__setitem__(slot_of[tv], None))
                if h == 1 and j == 3: s.at(b0 + 96, barrier)
                if h == 1 and j == 3 and xfin: s.at(b0 + xfin[0], lambda: S.update(X=xfin[1]))
            if j > 0 or T > 0:
                if T == 0: s.at(b0 - 32, acq_v(h, j))
                s.spread(v_reads(h, j, T), b0 + 32 * (T - 1) + 1, b0 + 32 * (T - 1) + 25)
                s.at(b0 + 32 * T - 1, lambda T=T: p.wait_regs(rng(VFB + 32 * (T & 1), 32)))

    def vc(x): return 8 if x.kind == "trans" else 4
    def run_valu(items, extra=None):
        extra = list(extra or []); n = len(items); k = 0
        for i, x in enumerate(items):
            while k < len(extra) and k * n <= i * len(extra):
                run([extra[k]]); k += 1
            if isinstance(x, I): A(x); tick(vc(x))
            else: x()
        run(extra[k:])
    def red(op, x, t):
        return [valu("v_mov_b32", t, x), None, swap(32, x, t), valu(op, x, x, t), valu("v_mov_b32", t, x), None, swap(16, x, t), valu(op, x, x, t)]
    def ilv(*ls):
        out = []
        for k in range(max(map(len, ls))):
            out += [l[k] for l in ls if k < len(l) and l[k] is not None]
        return out
    def pk(op, dd, srcs, mods, rd): return I(f"{op} {vr(dd,2)}, " + ", ".join(srcs) + mods, "valu", rd=rd, wr=rng(dd, 2))
    def max_tile(mx, bz, t):
        r = bz + 4 * t
        if t == 0: return [valu("v_max_f32", mx, r, r + 1), valu("v_max3_f32", mx, mx, r + 2, r + 3)]
        return [valu("v_max3_f32", mx, mx, r, r + 1), valu("v_max3_f32", mx, mx, r + 2, r + 3)]
    def add_max(s):
        b0 = len(s.mf) - 128
        s.at(b0 + 9, lambda: S.__setitem__("mx3live", True))
        for t in range(16):
            for z in range(3): s.spread(max_tile(MXR[z], SB(z), t), b0 + 8 * t + 2 * z + 9, b0 + 8 * t + 2 * z + 11)
            if z3 and (t < 8 or z3 == 2):
                dst = 192 + 4 * t if t < 8 else CH
                it = [accrd(dst + r, AG + 4 * t + r) for r in range(4)] + max_tile(MXR[3], dst - 4 * t, t)
                for k, x in enumerate(it): s.at(b0 + 8 * t + (15, 15, 16 + 2, 16 + 3, 16 + 4, 16 + 5)[k], x)
    def sm_exp(z, bz0, nm):
        class _B:
            def __add__(s_, i): return (192 + i) if (z3 and z == 3 and i < 32) else bz0 + i
        bz = _B()
        fm = lambda i: pk("v_pk_fma_f32", bz + i, [vr(bz + i, 2), "s[34:35]", vr(nm, 2)], " op_sel_hi:[1,1,0]", rng(bz + i, 2) | {nm})
        ex = lambda i: trans("v_exp_f32", bz + i, bz + i)
        def ad(i):
            if i == 0: return []
            if i == 2: return [pk("v_pk_add_f32", CH, [vr(bz + 0, 2), vr(bz + 2, 2)], "", rng(bz + 0, 4))]
            return [pk("v_pk_add_f32", CH, [vr(CH, 2), vr(bz + i, 2)], "", rng(CH, 2) | rng(bz + i, 2))]
        cv = lambda i: valu("v_cvt_pk_bf16_f32", PB(z) + i // 2, bz + i, bz + i + 1)
        it = [fm(0), fm(2), ex(0), ex(1)]
        for i in range(0, 64, 2):
            if i + 4 < 64: it.append(fm(i + 4))
            if i + 2 < 64: it.append(ex(i + 2))
            it += ad(i)
            if i + 2 < 64: it.append(ex(i + 3))
            if i == 2: it.append(cv(0))
            if i >= 2: it.append(cv(i))
        it.append(valu("v_add_f32", RINV + z, CH, CH + 1))
        return it
    def sum_fin(z): return [x for x in red("v_add_f32", RINV + z, T1) if x is not None] + [trans("v_rcp_f32", RINV + z, RINV + z)]
    NEGC = hex(f2u(-C_LOG2E))
    def softmax(h):
        setX("sm1" if h else "sm")()
        if smbar: barrier()
        reds = [red("v_max_f32", MXR[0], T1), red("v_max_f32", MXR[1], T3), red("v_max_f32", MXR[2], CH + 3)]
        if z3 == 2: reds.append(red("v_max_f32", MXR[3], CH + 2))
        run_valu(ilv(*reds))
        run_valu([valu("v_mul_f32", T0, NEGC, MXR[0]), valu("v_mul_f32", T2, NEGC, MXR[1])])
        run_valu(sm_exp(0, SB(0), T0))
        run_valu(sm_exp(1, SB(1), T2), [valu("v_mul_f32", T0, NEGC, MXR[2])] + sum_fin(0))
        body = sm_exp(2, SB(2), T0)
        run_valu(body, sum_fin(1) + ([valu("v_mul_f32", T2, NEGC, MXR[3])] if z3 == 2 else []))
        t0 = 8 if z3 else 0
        mv = []
        for t in range(t0, 16):
            mv += [accrd(TMP3 + 4 * t + r, AG + 4 * t + r) for r in range(4)]
            if z3 < 2 and t > t0: mv += max_tile(MXR[3], TMP3, t - 1)
        if z3 < 2:
            mv += max_tile(MXR[3], TMP3, 15)
            run_valu(mv)
            run_valu(ilv(red("v_max_f32", MXR[3], T3), red("v_add_f32", RINV + 2, T1)))
            run_valu([valu("v_mul_f32", T2, NEGC, MXR[3]), trans("v_rcp_f32", RINV + 2, RINV + 2)])
        else: run_valu(mv, sum_fin(2))
        body = sm_exp(3, TMP3, T2)
        half = len(body) // 2
        run_valu(body[:half])
        acq_v(h, 0)()
        run_valu(body[half:-20], v_reads(h, 0, 0))
        run_valu(body[-20:])
        p.wait_lgkm(0)
        qbuf_free[0] = True; S['mx3live'] = False
        setX("pv1" if h else "pv")()

    s = St()
    for j in range(4): add_qk(s, 0, j, False)
    add_max(s)
    s.go(); stamp()
    softmax(0)
    s = St()
    s.spread(sum_fin(3), 0, 10)
    for j in range(4): add_pv(s, 0, j)
    for j in range(4): add_qk(s, 1, j, j == 0)
    add_max(s)
    s.go(); stamp()
    softmax(1)
    s = St()
    s.spread(sum_fin(3), 0, 10)
    for j in range(4): add_pv(s, 1, j)
    s.go(); stamp()
    assert S["n"] == ND
    while stq:
        st_service()
        assert store()
    if diag is not None:
        base, idx = diag
        p.wait_vm(0); barrier(); stamp()
        if idx == "min":
            R("s_load_dwordx2 s[32:33], s[0:1], 32"); p.out.append(I("s_waitcnt lgkmcnt(0)", "wait"))
            R("s_and_b32 s33, s33, 0xffff"); R("s_mov_b32 s34, 256"); R("s_mov_b32 s35, 0x20000")
            R("s_not_b32 s90, s44")
            A(valu("v_mov_b32", 6, "0")); A(valu("v_mov_b32", 7, "s90"))
            R("s_mov_b64 exec, 1")
            A(I("buffer_atomic_umax v7, v6, s[32:35], 0 offen sc1", "wait"))
            R("s_waitcnt vmcnt(0)")
            R(f"s_add_u32 s91, s44, {(base-30)*100}")
            R("L_spin0:")
            R("s_memrealtime s[92:93]"); p.out.append(I("s_waitcnt lgkmcnt(0)", "wait"))
            R("s_sub_u32 s92, s92, s91"); R("s_cmp_lt_i32 s92, 0"); R("s_cbranch_scc1 L_spin0")
            A(valu("v_mov_b32", 7, "0"))
            A(I("buffer_atomic_umax v7, v6, s[32:35], 0 offen sc0 sc1", "wait"))
            R("s_waitcnt vmcnt(0)")
            R("v_readfirstlane_b32 s90, v7"); R("s_nop 3")
            R("s_not_b32 s90, s90"); R(f"s_add_u32 s90, s90, {base*100}")
        elif idx is None: R(f"s_add_u32 s90, s44, {base*100}")
        else: R(f"s_add_u32 s90, s{44+2*(idx % nstamp[0])}, {base*100}")
        R("L_spin:")
        R("s_memrealtime s[92:93]"); p.out.append(I("s_waitcnt lgkmcnt(0)", "wait"))
        R("s_sub_u32 s92, s92, s90"); R("s_cmp_lt_i32 s92, 0"); R("s_cbranch_scc1 L_spin")
    elif stamps:
        S["fin"] = True
        p.wait_vm(0); barrier(); stamp()
        ns = nstamp[0]
        R("s_cmp_lg_u32 s3, 0"); R("s_cbranch_scc1 L_end")
        R("s_mov_b32 s32, s14"); R("s_and_b32 s33, s15, 0xffff"); R("s_mov_b32 s34, 0x10000000"); R("s_mov_b32 s35, 0x20000")
        R(f"s_getreg_b32 s{44+2*ns}, hwreg(HW_REG_XCC_ID)"); R(f"s_getreg_b32 s{45+2*ns}, hwreg(HW_REG_HW_ID)"); ns += 1
        R(f"s_mul_i32 s36, s2, {ns*8}")
        A(valu("v_mov_b32", 6, "0"))
        for n in range(ns):
            A(valu("v_mov_b32", 12, f"s{44+2*n}")); A(valu("v_mov_b32", 13, f"s{45+2*n}"))
            A(I(f"buffer_store_dwordx2 v[12:13], v6, s[32:35], s36 offen offset:{n*8}", "store", rd={12, 13, 6}))
    src = HDR + "; @launch grid=(256,1,1) block=(256,1,1) lds=163840\n"
    src += '.amdgcn_target "amdgcn-amd-amdhsa--gfx950"\n.text\n' + f".globl {KN}\n.p2align 8\n.type {KN},@function\n{KN}:\n"
    src += p.text() + "\nL_end:\ns_endpgm\n"
    src += f""".section .rodata,"a"
.p2align 6
.amdhsa_kernel {KN}
  .amdhsa_next_free_vgpr 512
  .amdhsa_next_free_sgpr 102
  .amdhsa_accum_offset 256
  .amdhsa_group_segment_fixed_size 0
  .amdhsa_kernarg_size 48
  .amdhsa_user_sgpr_count 2
  .amdhsa_user_sgpr_kernarg_segment_ptr 1
  .amdhsa_system_sgpr_workgroup_id_x 1
.end_amdhsa_kernel
"""
    return src, f"stamps {nstamp[0]} instrs {len(p.out)} nops {p.nops}/{p.nopstates} skips {S['skips']} slots " + "".join(str(x) for x in slot_of.values()) + "\n     " + " ".join(log)

from base import *
if __name__ == "__main__":
    V = eval(open(sys.argv[1]).read())
    for n, kw in V.items():
        s, info = gen(**kw)
        open(n + ".s", "w").write(s)
        print(n, info)
    print(" ".join(n + ".s" for n in V))
    print(json.dumps(["work/icscrub.s", "work/sens.sh", "work/idle100.s", "work/k_br.s", "work/bench.py", "cdna_kernels/cdna_launch.py", "cdna_kernels/cdna_unwritten_srd_check.py", "work/scrub_read.s"] + ["work/" + n + ".s" for n in V]))
```

```python
import sys, json, math, struct
from asmfw3 import *
KN = "standalone__mha_softmax__near_ridge_kernel"

HDR = """; Fused attention  out = softmax(Q K^T / 16) V,  B*H = 512 heads, Sq = Sk = D = 256, bf16 in/out, fp32 accumulation.
; (Straight-line code emitted by a generator script written for this kernel.)
;
; Data path    : Q/K/V stream through five 32 KiB LDS slots by LDS-DMA, one tile = 256 rows x 64 columns,
;                LDS row <-> memory row is a per-workgroup bit permutation (same for K and V, same for Q and out),
; PV           : O^T = V^T P^T, V fragments by ds_read_b64_tr_b16, 8-deep accumulation chains, scaled by 1/sum in fp32.
; Output       : transposed through LDS into full 128-byte rows.  Head 0's output waits in AGPRs; all stores are
;                issued after the last load so HBM sees one read phase and one write phase.
; Registers    : v0-191 S (q blocks 0-2) / P / O tiles, v192-223 Q fragments, v224-255 addresses and scalars,
"""
def SB(z): return 64 * z if z < 3 else AG
def PB(z): return 32 * z
TMP3 = 128; OACC = 176; KEEP = 152
QFB = (192, AG + 64); KF = AG + 96; VFB = AG; HOLD = AG + 128
DL, KB, QB, VB, WB, RB, SO = range(224, 231)
CA = 232; CQ = 236; CW = 238; CR = 242; RINV = 244; T0 = 248; T1 = 249; CH = 250; T2 = 254; T3 = 255; MXR = (231, 243, 242, 237)
SRD = {"q": 16, "k": 20, "v": 24, "o": 28}
C_LOG2E = math.log2(math.e) / 16.0
def f2u(x): return struct.unpack("<I", struct.pack("<f", x))[0]
XDEF = dict(qk0=128, qk3=160, sm=250, pv=176, qk1=150, sm1=250, pv1=140)

def gen(W=6, WS=8, X=None, ld="nt", st="sc1", stamps=False, diag=None, cyc=0, nomem=False,
        qpos=(1, 3), ks=3, stdelay=0, Wp=None, smbar=True, ipf=4, ipfpol='', rot=None, hmap=0, wlast=None, wsr=None, st0=None, st1=None, tlb=False, ksp=None, zfin=True, order=None, w0=None, ipfearly=True, stress=None, trickle=None, prel=None, z3=1, pst=False, stx=None, plain=(), nopf=0, xfin=None, xm=None, ib=(9, 10, 11), kvb=(12, 13, 14, 15, 16), qob=(15, 16, 12, 13, 14), xw=None, xm2=None, sord=0, wsch=None, wse=None, drain=0, fake=None, saw=None, dbb=(7, 8), dg=None):
    assert sorted(ib + kvb + dbb) == sorted(ib + qob + dbb) == list(range(7, 17))
    def scat(v, bits): return sum(((v >> k) & 1) << b_ for k, b_ in enumerate(bits))
    XX = dict(XDEF); XX.update(X or {})
    WW = {k: W for k in XX}; WW.update(Wp or {})
    for D_ in (XX, WW):
        for j in range(4):
            D_.setdefault(f"qk0{j}", D_["qk3" if j == 3 else "qk0"]); D_.setdefault(f"qk1{j}", D_["qk1"])
            D_.setdefault(f"pv0{j}", D_["pv"]); D_.setdefault(f"pv1{j}", D_["pv1"])
    KS = {(h, j): ks for h in range(2) for j in range(4)}; KS.update(ksp or {})
    p = Prog(); R = p.raw; A = p.add
    nstamp = [0]
    log = []
    def stamp():
        try: log.append(f"{S['n'] + 64 - len(stq)}/{S['skips']}")
        except NameError: pass
        if stamps and not (pst and 5 < nstamp[0] and not S.get("fin")):
            R(f"{'s_memtime' if cyc == 1 else 's_memrealtime'} s[{44+2*nstamp[0]}:{45+2*nstamp[0]}]")
            if cyc == 2: R("s_memtime s[94:95]")
            p.out.append(I("s_waitcnt lgkmcnt(0)", "wait")); p.lds_q = []
            if cyc == 2: R(f"s_mov_b32 s{45+2*nstamp[0]}, s94")
            nstamp[0] += 1
    stamp()
    R("s_load_dwordx8 s[4:11], s[0:1], 0")
    R("s_cmp_ge_u32 s2, 256"); R("s_cbranch_scc1 L_end")
    if stamps: R("s_load_dwordx2 s[14:15], s[0:1], 40")
    WV, L = T0, T1
    a, b, c, d = CH, CH + 1, CH + 2, CH + 3
    A(valu("v_lshrrev_b32", WV, "6", 0))
    A(valu("v_and_b32", L, "63", 0))
    A(I(f"v_readfirstlane_b32 s3, v{WV}", "rfl", rd={WV}))
    A(valu("v_lshrrev_b32", b, "3", L)); A(valu("v_and_b32", a, "6", b)); A(valu("v_and_b32", c, "7", L))
    A(valu("v_xor_b32", a, a, c)); A(valu("v_lshlrev_b32", a, "4", a))
    def lane_rows(dst, acc, i, t):
        if ib[1] == ib[0] + 1 and ib[2] == ib[0] + 2: A(valu("v_lshl_add_u32", dst, i, str(ib[0]), acc)); return
        for k in range(3):
            A(valu("v_bfe_u32", t, i, str(k), "1")); A(valu("v_lshl_add_u32", dst if k == 2 else acc, t, str(ib[k]), acc))
    lane_rows(DL, a, b, c)
    JM = scat(7, kvb[2:])
    def diag_rows(dst, i, t):
        for k in range(3):
            if dg[k] is not None:
                A(valu("v_bfe_u32", t, i, str(k), "1")); A(valu("v_lshlrev_b32", t, str(dg[k]), t)); A(valu("v_xor_b32", dst, dst, t))
    if dg:
        assert kvb == qob and all(x is None or (1 << x) & JM for x in dg)
        diag_rows(DL, b, c)
    if hmap in (2, 3):
        R("s_and_b32 s37, s2, 7"); R("s_lshl_b32 s37, s37, 5"); R("s_lshr_b32 s36, s2, 3"); R("s_or_b32 s37, s37, s36")
        R(f"s_lshl_b32 s37, s37, {18 if hmap == 3 else 17}")
    else: R(f"s_lshl_b32 s37, s2, {18 if hmap else 17}")
    R("s_lshl_b32 s39, s3, 10")
    if rot is not None:
        R(f"s_lshr_b32 s36, s2, {rot}"); R("s_and_b32 s36, s36, 3"); R("s_lshl_b32 s36, s36, 7"); R("s_or_b32 s37, s37, s36")
    for dst, bits in (("s40", qob), ("s42", kvb)):
        if bits[1] == bits[0] + 1: R(f"s_lshl_b32 s36, s3, {bits[0]}"); R(f"s_add_u32 {dst}, s37, s36")
        else:
            R("s_and_b32 s36, s3, 1"); R(f"s_lshl_b32 s36, s36, {bits[0]}"); R(f"s_add_u32 {dst}, s37, s36")
            R("s_lshr_b32 s36, s3, 1"); R(f"s_lshl_b32 s36, s36, {bits[1]}"); R(f"s_add_u32 {dst}, {dst}, s36")
    if xm:
        R(f"s_mul_i32 s36, s2, {hex(xm[0])}"); R(f"s_lshr_b32 s36, s36, {xm[1]}"); R(f"s_and_b32 s36, s36, {hex(xm[2] & ~scat(7, ib))}")
        if dg:
            R(f"s_and_b32 s38, s36, {hex(JM)}"); R("s_xor_b32 s36, s36, s38")
            A(valu("v_xor_b32", DL, "s38", DL))
        R("s_xor_b32 s40, s40, s36"); R("s_xor_b32 s42, s42, s36")
    if xm2:
        R(f"s_mul_i32 s36, s2, {hex(xm2[0])}"); R(f"s_lshr_b32 s36, s36, {xm2[1]}"); R(f"s_and_b32 s36, s36, {hex(xm2[2] & ~scat(7, ib))}")
        R("s_xor_b32 s42, s42, s36")
    if xw:
        assert kvb == qob
        if xw[0] == "lin": R(f"s_mul_i32 s36, s3, {hex(xw[1])}")
        else:
            R("s_lshl_b32 s36, s2, 2"); R("s_add_u32 s36, s36, s3"); R(f"s_mul_i32 s36, s36, {hex(xw[1])}"); R(f"s_lshr_b32 s36, s36, {xw[2]}")
        R(f"s_and_b32 s36, s36, {hex(scat(7, qob[2:]))}")
        R("s_xor_b32 s40, s40, s36"); R("s_xor_b32 s42, s42, s36")
    def code_prefetch():
        nl = ipf * 8; sh = (ipf * 1024).bit_length() - 1
        p.out.append(I("; touch this kernel's code lines once (2 KiB per workgroup) so later instruction fetches hit L2", "cmt", states=0))
        R("s_getpc_b64 s[12:13]"); R("L_pc:")
        R("s_lshr_b32 s36, s2, 3"); R(f"s_and_b32 s36, s36, {64 // ipf - 1}")
        if nopf: R(f"s_lshr_b32 s38, {hex(nopf)}, s36"); R("s_and_b32 s38, s38, 1"); R("s_cselect_b32 s36, 0, s36")
        R(f"s_lshl_b32 s36, s36, {sh}")
        A(valu("v_and_b32", a, str(nl - 1), 0))
        A(valu("v_lshl_add_u32", a, a, "7", "s36"))
        A(valu("v_min_u32", a, "L_end-L_pc", a))
        A(valu("v_mov_b32", b, "s13"))
        A(I(f"v_add_co_u32 v{a}, vcc, s12, v{a}", "valu", rd={a}, wr={a}))
        R("s_cmp_lg_u32 s3, 3"); R("s_nop 0")
        A(I(f"v_addc_co_u32 v{b}, vcc, 0, v{b}, vcc", "valu", rd={b}, wr={b}))
        R("s_cbranch_scc1 L_nopf")
        A(I(f"global_load_dword v{T3}, v[{a}:{b}], off {ipfpol}", "wait", rd={a, b}, wr={T3}))
        R("L_nopf:")
    if ipf and ipfearly: code_prefetch()
    p.out.append(I("s_waitcnt lgkmcnt(0)", "wait"))
    def srd(nm, ptr):
        s = SRD[nm]
        R(f"s_mov_b32 s{s}, s{ptr}"); R(f"s_and_b32 s{s+1}, s{ptr+1}, 0xffff"); R(f"s_mov_b32 s{s+2}, 0x4000000"); R(f"s_mov_b32 s{s+3}, 0x20000")
    if pst: stamp()
    first_k = bool(order) and order[0] == "k"
    srd(*(("k", 6) if first_k else ("q", 4)))

    tiles = []
    for j in range(4): tiles += [(0, "q", j), (0, "k", j)]
    vs = [(0, "v", j) for j in range(4)] + [(1, "k", 0)]
    for k, pos in enumerate(qpos): vs.insert(pos, (1, "q", k))
    tiles += vs
    for j in range(1, 4):
        if j >= len(qpos): tiles.append((1, "q", j))
        tiles.append((1, "k", j))
    tiles += [(1, "v", j) for j in range(4)]
    if order:
        tl = lambda x: (int(x[2]) if len(x) > 2 else 0, x[0], int(x[1]))
        groups = [[tl(x) for x in gr.split("+")] for gr in order.split()]
        tiles = [t for gr in groups for t in gr]
        assert len(set(tiles)) == 24
    NT = len(tiles); assert NT == 24
    TI = {t: i for i, t in enumerate(tiles)}; ND = NT * 8
    SEQ = [(t, j) for gr in (groups if order else [[t] for t in tiles]) for j in range(8) for t in gr]
    IX = {x: n for n, x in enumerate(SEQ)}
    XT = (1, "k", 3)
    free = [0, 1, 2, 3, 4]; slot_of = {}; pend = []; relset = set(); avail = {k: 8 for k in range(5)}; partial = set()
    def slot(t): return slot_of[t] * 32768
    def release(t):
        relset.add(t)
        if t[:2] == (1, "v"): return
        avail[slot_of[t]] = 8
        if t not in partial: free.append(slot_of[t])
    def release_part(t, n):
        avail[slot_of[t]] = n
        if t not in partial: partial.add(t); free.append(slot_of[t])
    def barrier(drain=True):
        if drain: p.wait_lgkm(0)
        p.out.append(I("s_barrier", "bar"))
        if drain:
            for t in pend: release(t)
            pend.clear()
    S = {"n": 0, "acc": 0.0, "X": XX["qk0"], "W": WW["qk0"], "skips": 0}
    busy = {}
    def wait_loads(k):
        li = [i for i, t in enumerate(p.vm_q) if t[0] == "L"]
        if len(li) <= k or li[-k - 1] < p.vm_done: return
        p.out.append(I(f"s_waitcnt vmcnt({k})", "wait"))
        p.vm_done = max(p.vm_done, li[-k - 1] + 1)
    def dma(must=True):
        n = S["n"]; t, j = SEQ[n]; ti = TI[t]
        h, m, db = t
        if j == 0:
            if not free:
                assert not must, ("no free slot", t)
                return False
            slot_of[t] = free.pop(0)
        if j >= avail[slot_of[t]]:
            assert not must, "piece not released"
            return False
        if j >= 6 and slot_of[t] in busy:
            regs = busy[slot_of[t]]
            if regs is None:
                assert not must, "staging in progress"
                return False
            if p.lds_pending(regs): p.wait_lgkm(0)
            del busy[slot_of[t]]
        jj = j
        if fake:
            m = fake[n]; c_ = fake[:n].count(m); h, db, jj = c_ // 32, (c_ // 8) % 4, c_ % 8
        if dg:
            if jj != S.get("jl", 0): A(valu("v_xor_b32", DL, str(scat(jj ^ S.get("jl", 0), kvb[2:])), DL))
            S["jl"] = jj; jj = 0
        if m == "q": R(f"s_xor_b32 s96, s{40+h}, {scat(db, dbb) + scat(jj, qob[2:])}")
        else: R(f"s_xor_b32 s96, s{42+h}, {scat(db, dbb) + scat(jj, kvb[2:])}")
        A(salu(f"s_add_u32 m0, s39, {slot(t) + j*4096}", tag="m0"))
        wf = S['W']
        for n0, w_ in (wsch or []):
            if n >= n0: wf = w_
        wi = int(wf) + (1 if int((n + 1) * (wf % 1)) > int(n * (wf % 1)) else 0)
        if saw and n >= wi: wi += saw[SEQ[n - wi][1]]
        wait_loads((wlast[1] if wlast and n >= ND - wlast[0] else (max(wi, w0[1] - max(0, n - w0[0])) if w0 else wi)) - 1)
        if nomem and ti >= 5: A(I("s_nop 0", "dma", rd={DL}, tag=("L", n)))
        else: A(I(f"buffer_load_dwordx4 v{DL}, s[{SRD[m]}:{SRD[m]+3}], s96 offen {ld} lds", "dma", rd={DL}, tag=("L", n)))
        S["n"] += 1
        if trickle and S["n"] >= trickle[0] and (S["n"] - trickle[0]) % trickle[1] == 0 and S["n"] < trickle[2]: store(early=True)
        return True
    qtodo = [t for t in tiles if t[1] == "q"]; qbuf_free = [True, True]; qread = set(); qrel = []
    def q_emit(t):
        assert not S.get("mx3live")
        bq = QFB[t[2] & 1]
        A(valu("v_add_u32", CQ, str(slot(t)), QB)); A(valu("v_xor_b32", CQ + 1, "64", CQ))
        for z in range(4):
            for kk in range(2): A(ds_r128(bq + 8 * z + 4 * kk, CQ + kk, z * 8192))
        qbuf_free[t[2] & 1] = False; qread.add(t); qrel.append([t, 0]); qtodo.remove(t)
    def q_service(cost):
        for e in list(qrel):
            e[1] += cost
            regs = rng(QFB[e[0][2] & 1], 32)
            if p.lds_pending(regs) and e[1] > 400: p.wait_lgkm(0)
            if not p.lds_pending(regs): release(e[0]); qrel.remove(e)
        if qtodo:
            t = qtodo[0]
            if qbuf_free[t[2] & 1] and p.landed(("L", IX[(t, 7)])): q_emit(t)
    stq = [(h, db, s) for h in range(2) for db in range(4) for s in range(8)]
    if sord == 1: stq[:32] = [(0, db, s) for s in range(8) for db in range(4)]
    if sord == 2: stq[:32] = [(0, 2 * hf + d, s) for hf in range(2) for s in range(8) for d in range(2)]
    if sord == 3: stq[:32] = [(0, (k + k // 8) % 4, k % 8) for k in range(32)]
    assert len(set(stq)) == 64
    ready = set(); o1done = set(); stg = {j: (1, "v", j) for j in range(4)}
    def readback(t, db):
        A(valu("v_add_u32", CR, str(slot(t)), RB))
        for s in range(8): A(ds_r128(HOLD + 32 * db + 4 * s, CR, s * 4096))
    def st_service():
        for db in sorted(o1done):
            if (1, db) not in ready and not any(x[:2] == (0, db) for x in stq):
                readback(stg[db], db); ready.add((1, db)); return
    def store(early=False):
        h, db, s = stq[0]
        if (h, db) not in ready and (h, db, s) not in ready: return False
        stq.pop(0)
        if dg and s != S.get("sl", 0): A(valu("v_xor_b32", SO, str(scat(s ^ S.get("sl", 0), qob[2:])), SO))
        S["sl"] = s
        R(f"s_xor_b32 s97, s{40+h}, {scat(db, dbb) + (0 if dg else scat(s, qob[2:]))}")
        k = 63 - len(stq)
        ws = WS
        for lim, w_ in (wsr or []):
            if k < lim: ws = w_; break
        if not early:
            if not S.get("drained"): p.wait_vm(0); S["drained"] = True
            if ws: p.wait_vm(ws - 1)
            if wse and wse[1] <= k < wse[2]:
                wi = int(wse[0]) + (1 if int((k + 1) * (wse[0] % 1)) > int(k * (wse[0] % 1)) else 0)
                R(f"s_cbranch_vccnz L_w{k}")
                p.out.append(I(f"s_waitcnt vmcnt({wi-1})", "wait", states=0)); p.out.append(I(f"L_w{k}:", "cmt", states=0))
        pol = st0[1] if st0 and k < st0[0] else (st1[1] if st1 and k >= 64 - st1[0] else st)
        reg = HOLD + 32 * db + 4 * s
        if nomem: return True
        A(I(f"buffer_store_dwordx4 {vr(reg,4)}, v{SO}, s[28:31], s97 offen {pol}", "store", rd=rng(reg, 4) | {SO}, tag=("S", h, db, s)))
        return True
    def tick(cost):
        q_service(cost); st_service()
        S["acc"] += cost
        if S["acc"] >= S["X"]:
            if S["n"] < ND:
                ok = dma(must=False)
                if ok and wsch and any(S["n"] == n0 for n0, _ in wsch): dma(must=False)
                if ok and S["n"] == ND and not drain: S["acc"] -= stdelay
            elif S.get("dr", 0) < drain:
                S["dr"] = S.get("dr", 0) + 1
                wait_loads(int(wsch[-1][1]) - S["dr"]); ok = True
                if S["dr"] == drain: S["acc"] -= stdelay
            else:
                ok = bool(stq) and store()
                if ok and stx and 64 - len(stq) <= stx[0]: S["acc"] -= stx[1]
            if ok: S["acc"] -= S["X"]
            else: S["skips"] += 1
            S["acc"] = min(S["acc"], S["X"] + 32)
    def wait_landed(n):
        W = int(S["W"])
        forced = S["n"] <= n + W - 1
        while S["n"] <= n:
            dma(); q_service(0)
        while S["n"] < min(n + W, ND) and dma(must=False): q_service(0)
        wait_loads(S["n"] - 1 - n)
        if forced and S["n"] < ND:
            dma(must=False); S["acc"] = 0
    for _ in range(min(8, w0[1] if w0 else int(S['W']))): dma()
    if pst: stamp()
    srd(*(("q", 4) if first_k else ("k", 6)))
    while w0 and S["n"] < w0[1]: dma()
    if ipf and not ipfearly: code_prefetch()
    srd("v", 8); srd("o", 10)
    R(f"s_add_u32 s41, s40, {0x20000 if hmap in (1, 3) else 0x2000000}"); R(f"s_add_u32 s43, s42, {0x20000 if hmap in (1, 3) else 0x2000000}")
    if tlb:
        A(valu("v_lshlrev_b32", a, "25", L)); A(valu("v_and_b32", a, "0x2000000", a))
        R("s_cmp_lg_u32 s3, 2"); R("s_cbranch_scc1 L_notlb")
        R("s_mov_b64 exec, 3")
        for nm in ("k", "v", "o", "q"):
            A(I(f"buffer_load_dword v{T3}, v{a}, s[{SRD[nm]}:{SRD[nm]+3}], s40 offen nt", "wait", rd={a}, wr={T3}))
        R("s_mov_b64 exec, -1")
        R("L_notlb:")
    A(valu("v_lshrrev_b32", c, "4", L))
    A(valu("v_and_b32", a, "6", L)); A(valu("v_xor_b32", a, a, c)); A(valu("v_lshlrev_b32", a, "4", a))
    A(valu("v_and_b32", b, "15", L)); A(valu("v_lshl_add_u32", KB, b, "7", a))
    A(valu("v_bfe_u32", b, L, "3", "1")); A(valu("v_lshlrev_b32", b, "12", b))
    A(valu("v_and_b32", d, "7", L)); A(valu("v_lshl_add_u32", b, d, "7", b)); A(valu("v_lshl_add_u32", b, WV, "10", b))
    A(valu("v_add_u32", QB, a, b))
    A(valu("v_lshrrev_b32", a, "1", c)); A(valu("v_xor_b32", a, a, d)); A(valu("v_lshl_add_u32", b, a, "4", b))
    A(valu("v_and_b32", a, "1", c)); A(valu("v_lshl_add_u32", WB, a, "3", b))
    A(valu("v_lshrrev_b32", b, "2", L)); A(valu("v_and_b32", a, "6", b)); A(valu("v_bfe_u32", c, L, "1", "1"))
    A(valu("v_xor_b32", a, a, c)); A(valu("v_lshlrev_b32", a, "4", a)); A(valu("v_lshl_add_u32", a, b, "7", a))
    A(valu("v_and_b32", c, "1", L)); A(valu("v_lshl_add_u32", VB, c, "3", a))
    A(valu("v_lshrrev_b32", b, "3", L)); A(valu("v_xor_b32", a, d, b)); A(valu("v_lshlrev_b32", a, "4", a))
    lane_rows(SO, a, b, c)
    if dg:
        diag_rows(SO, b, c)
        if xm: A(valu("v_xor_b32", SO, "s38", SO))
    A(valu("v_lshlrev_b32", a, "4", L)); A(valu("v_lshl_add_u32", RB, WV, "10", a))
    R(f"s_mov_b32 s34, {hex(f2u(C_LOG2E))}"); R("s_mov_b32 s35, s34")
    if wse:
        p.out.append(I("; vcc = odd compute die (even dies win write arbitration, so they keep fewer stores in flight)", "cmt", states=0))
        R("s_getreg_b32 s36, hwreg(HW_REG_XCC_ID)"); R("s_and_b32 s36, s36, 1"); R("s_cselect_b64 vcc, -1, 0")

    if pst:
        stamp(); p.out.append(I(f"s_waitcnt vmcnt({int(S['W'])-1})", "wait")); stamp()
    def run(items):
        for it in items:
            if isinstance(it, list): run(it)
            elif isinstance(it, I): A(it)
            else: it()
    NAMES = dict(qk="S^T += K Q^T, head {h}, d block {j}", pv="O^T = V^T P^T, head {h}, d block {j}")
    def setX(k):
        def f():
            S.update(X=XX[k], W=WW[k], ph=k)
            if len(k) == 4: p.out.append(I("; ---- " + NAMES[k[:2]].format(h=k[2], j=k[3]), "cmt", states=0))
            elif k[:2] == "sm": p.out.append(I("; ---- softmax, head " + (k[2:] or "0"), "cmt", states=0))
        return f
    def addrs(dst, base, t, xs):
        A(valu("v_add_u32", dst, str(slot(t)), base))
        for k, x in enumerate(xs): A(valu("v_xor_b32", dst + 1 + k, str(x), dst))

    def parts(h, j):
        k = KS[(h, j)]
        k = list(k) if isinstance(k, (tuple, list)) else [k]
        return k if k[-1] == 8 else k + [8]
    def acq_k(h, j, part):
        tk, tq = (h, "k", j), (h, "q", j)
        def f():
            if part == 0:
                wait_landed(IX[(tk, parts(h, j)[0] - 1)])
                if tq not in qread:
                    assert qbuf_free[j & 1]; wait_landed(IX[(tq, 7)])
                    if tq not in qread: q_emit(tq)
                barrier(); addrs(CA, KB, tk, (64,)); stamp()
            else:
                wait_landed(IX[(tk, parts(h, j)[part] - 1)]); barrier(drain=False)
        return f
    def acq_v(h, j):
        tv = (h, "v", j)
        def f():
            wait_landed(IX[(tv, 7)])
            barrier(); addrs(CA, VB, tv, (32, 64, 96)); stamp()
        return f
    def k_reads(h, j, t):
        it = [ds_r128(KF + 8 * (t & 3) + 4 * kk, CA + kk, t * 2048) for kk in range(2)]
        if t == 15: it.append(lambda: pend.append((h, "k", j)))
        return it
    def v_reads(h, j, T):
        it = [ds_tr(VFB + 32 * (T & 1) + 4 * m + 2 * u, CA + T, m * 4096 + u * 2048) for m in range(8) for u in range(2)]
        if T == 3: it.append(lambda: pend.append((h, "v", j)))
        return it
    class St:
        def __init__(s): s.mf = []; s.side = {}
        def at(s, i, it): s.side.setdefault(i, []).append(it)
        def spread(s, items, first, last):
            for k, it in enumerate(items): s.at(first + (k * (last - first)) // len(items), it)
        def go(s):
            def flat(l):
                o = []
                for x in l: o += flat(x) if isinstance(x, list) else [x]
                return o
            def order(l):
                out = []
                for x in flat(l):
                    k = len(out)
                    if isinstance(x, I) and x.kind in ("dsr", "dsw"):
                        while k > 0 and isinstance(out[k-1], I) and out[k-1].kind in VAL and not (
                                (x.rd & out[k-1].wr) or (x.wr & (out[k-1].rd | out[k-1].wr))): k -= 1
                    out.insert(k, x)
                return out
            for i in sorted(k for k in s.side if k < 0): run(s.side[i])
            for i, m in enumerate(s.mf):
                A(m)
                if S.get('ph', 'qk00')[:3] in plain: run(s.side.get(i, [])); tick(16)
                else: tick(16); run(order(s.side.get(i, [])))
                if stress:
                    ph = S.get("ph", "qk00")
                    S["sa"] = S.get("sa", 0) + stress.get(ph, stress.get(ph[:3], stress.get("all", 0)))
                    while S["sa"] >= 1:
                        S["sa"] -= 1; S["sn"] = S.get("sn", 0) + 1
                        p.out.append(I(f"v_mul_f32 v{T2 + (S['sn'] & 1)}, v{192 + S['sn'] * 7 % 32}, v{192 + S['sn'] * 11 % 32}", "valu"))
            for i in sorted(k for k in s.side if k >= len(s.mf)):
                run(s.side[i])
    def add_qk(s, h, j, after_pv):
        b0 = len(s.mf); bq = QFB[j & 1]
        for t in range(16):
            for z in range(4):
                for kk in range(2):
                    D = SB(z) + 4 * t
                    s.mf.append(mfma16(D, KF + 8 * (t & 3) + 4 * kk, bq + 8 * z + 4 * kk, None if (j == 0 and kk == 0) else D))
        s.at(b0 - (32 if after_pv else 16), acq_k(h, j, 0))
        for pi in range(1, len(parts(h, j))): s.at(b0 + 8 * (2 * parts(h, j)[pi-1] - 2), acq_k(h, j, pi))
        for gp in (prel or {}).get((h, j), ()):
            s.at(b0 + 8 * gp, lambda gp=gp: (barrier(), release_part((h, "k", j), (gp + 2) // 2)))
        for t in range(16): s.spread(k_reads(h, j, t), b0 + 8 * (t - 2), b0 + 8 * (t - 2) + 3)
        for t in range(16): s.at(b0 + 8 * t - 1, lambda t=t: p.wait_regs(rng(KF + 8 * (t & 3), 8)))
        if not (z3 and j == 2): s.at(b0 + 127, lambda: qbuf_free.__setitem__(j & 1, True))
        s.at(b0 - 1, setX(f"qk{h}{j}"))
    def add_pv(s, h, j):
        b0 = len(s.mf); tv = (h, "v", j)
        s.at(b0 - 1 if b0 else 0, setX(f"pv{h}{j}"))
        for T in range(4):
            for z in range(4):
                acc = OACC + 4 * z
                for m in range(8):
                    s.mf.append(mfma16(acc, VFB + 32 * (T & 1) + 4 * m, PB(z) + 4 * m, None if m == 0 else acc))
                e = b0 + 32 * T + 8 * z + 7
                dst = KEEP + 6 * z + 2 * T if T < 3 else acc
                it = [valu("v_mul_f32", acc + r, RINV + z, acc + r) for r in range(4)]
                it += [valu("v_cvt_pk_bf16_f32", dst, acc, acc + 1), valu("v_cvt_pk_bf16_f32", dst + 1, acc + 2, acc + 3)]
                s.spread(it, e + 4, e + 10)
                if T == 3:
                    zo = 3 * 8192 if h == 0 else z * 8192
                    s.spread([ds_w64(CW + k, KEEP + 6 * z + 2 * k, zo) for k in range(3)], e + 5, e + 10)
                    s.at(e + 10, ds_w64(CW + 3, acc, zo))
                    if h == 0:
                        for k in range(2): s.at(e + 11 + k, ds_r128(HOLD + 32 * j + 8 * z + 4 * k, CR, (6 + k) * 4096))
                        if z == 3: s.at(e + 12, lambda: (busy.__setitem__(slot_of[tv], rng(HOLD + 32 * j, 32)), ready.add((0, j))))
                    elif zfin and j == 3:
                        def rb(z=z):
                            assert not any(x[:2] == (0, 3) for x in stq)
                            A(valu("v_add_u32", CQ, str(slot(tv)), RB))
                            for k in range(2): A(ds_r128(HOLD + 96 + 8 * z + 4 * k, CQ, (2 * z + k) * 4096))
                        s.at(e + 11, rb)
                        s.at(e + (13 if xfin else 15), lambda z=z: ready.update({(1, 3, 2 * z), (1, 3, 2 * z + 1)}))
                    elif z == 3: s.at(e + 10, lambda: o1done.add(j))
            if T == 3:
                def f():
                    assert tv in relset
                    addrs(CW, WB, tv, (32, 64, 96))
                    if h == 0: A(valu("v_add_u32", CR, str(slot(tv)), RB))
                s.at(b0 + 96 + 6, f)
                if h == 0: s.at(b0 + 64, lambda: busy.__setitem__(slot_of[tv], None))
                if h == 1 and j == 3: s.at(b0 + 96, barrier)
                if h == 1 and j == 3 and xfin: s.at(b0 + xfin[0], lambda: S.update(X=xfin[1]))
            if j > 0 or T > 0:
                if T == 0: s.at(b0 - 32, acq_v(h, j))
                s.spread(v_reads(h, j, T), b0 + 32 * (T - 1) + 1, b0 + 32 * (T - 1) + 25)
                s.at(b0 + 32 * T - 1, lambda T=T: p.wait_regs(rng(VFB + 32 * (T & 1), 32)))

    def vc(x): return 8 if x.kind == "trans" else 4
    def run_valu(items, extra=None):
        extra = list(extra or []); n = len(items); k = 0
        for i, x in enumerate(items):
            while k < len(extra) and k * n <= i * len(extra):
                run([extra[k]]); k += 1
            if isinstance(x, I): A(x); tick(vc(x))
            else: x()
        run(extra[k:])
    def red(op, x, t):
        return [valu("v_mov_b32", t, x), None, swap(32, x, t), valu(op, x, x, t), valu("v_mov_b32", t, x), None, swap(16, x, t), valu(op, x, x, t)]
    def ilv(*ls):
        out = []
        for k in range(max(map(len, ls))):
            out += [l[k] for l in ls if k < len(l) and l[k] is not None]
        return out
    def pk(op, dd, srcs, mods, rd): return I(f"{op} {vr(dd,2)}, " + ", ".join(srcs) + mods, "valu", rd=rd, wr=rng(dd, 2))
    def max_tile(mx, bz, t):
        r = bz + 4 * t
        if t == 0: return [valu("v_max_f32", mx, r, r + 1), valu("v_max3_f32", mx, mx, r + 2, r + 3)]
        return [valu("v_max3_f32", mx, mx, r, r + 1), valu("v_max3_f32", mx, mx, r + 2, r + 3)]
    def add_max(s):
        b0 = len(s.mf) - 128
        s.at(b0 + 9, lambda: S.__setitem__("mx3live", True))
        for t in range(16):
            for z in range(3): s.spread(max_tile(MXR[z], SB(z), t), b0 + 8 * t + 2 * z + 9, b0 + 8 * t + 2 * z + 11)
            if z3 and (t < 8 or z3 == 2):
                dst = 192 + 4 * t if t < 8 else CH
                it = [accrd(dst + r, AG + 4 * t + r) for r in range(4)] + max_tile(MXR[3], dst - 4 * t, t)
                for k, x in enumerate(it): s.at(b0 + 8 * t + (15, 15, 16 + 2, 16 + 3, 16 + 4, 16 + 5)[k], x)
    def sm_exp(z, bz0, nm):
        class _B:
            def __add__(s_, i): return (192 + i) if (z3 and z == 3 and i < 32) else bz0 + i
        bz = _B()
        fm = lambda i: pk("v_pk_fma_f32", bz + i, [vr(bz + i, 2), "s[34:35]", vr(nm, 2)], " op_sel_hi:[1,1,0]", rng(bz + i, 2) | {nm})
        ex = lambda i: trans("v_exp_f32", bz + i, bz + i)
        def ad(i):
            if i == 0: return []
            if i == 2: return [pk("v_pk_add_f32", CH, [vr(bz + 0, 2), vr(bz + 2, 2)], "", rng(bz + 0, 4))]
            return [pk("v_pk_add_f32", CH, [vr(CH, 2), vr(bz + i, 2)], "", rng(CH, 2) | rng(bz + i, 2))]
        cv = lambda i: valu("v_cvt_pk_bf16_f32", PB(z) + i // 2, bz + i, bz + i + 1)
        it = [fm(0), fm(2), ex(0), ex(1)]
        for i in range(0, 64, 2):
            if i + 4 < 64: it.append(fm(i + 4))
            if i + 2 < 64: it.append(ex(i + 2))
            it += ad(i)
            if i + 2 < 64: it.append(ex(i + 3))
            if i == 2: it.append(cv(0))
            if i >= 2: it.append(cv(i))
        it.append(valu("v_add_f32", RINV + z, CH, CH + 1))
        return it
    def sum_fin(z): return [x for x in red("v_add_f32", RINV + z, T1) if x is not None] + [trans("v_rcp_f32", RINV + z, RINV + z)]
    NEGC = hex(f2u(-C_LOG2E))
    def softmax(h):
        setX("sm1" if h else "sm")()
        if smbar: barrier()
        reds = [red("v_max_f32", MXR[0], T1), red("v_max_f32", MXR[1], T3), red("v_max_f32", MXR[2], CH + 3)]
        if z3 == 2: reds.append(red("v_max_f32", MXR[3], CH + 2))
        run_valu(ilv(*reds))
        run_valu([valu("v_mul_f32", T0, NEGC, MXR[0]), valu("v_mul_f32", T2, NEGC, MXR[1])])
        run_valu(sm_exp(0, SB(0), T0))
        run_valu(sm_exp(1, SB(1), T2), [valu("v_mul_f32", T0, NEGC, MXR[2])] + sum_fin(0))
        body = sm_exp(2, SB(2), T0)
        run_valu(body, sum_fin(1) + ([valu("v_mul_f32", T2, NEGC, MXR[3])] if z3 == 2 else []))
        t0 = 8 if z3 else 0
        mv = []
        for t in range(t0, 16):
            mv += [accrd(TMP3 + 4 * t + r, AG + 4 * t + r) for r in range(4)]
            if z3 < 2 and t > t0: mv += max_tile(MXR[3], TMP3, t - 1)
        if z3 < 2:
            mv += max_tile(MXR[3], TMP3, 15)
            run_valu(mv)
            run_valu(ilv(red("v_max_f32", MXR[3], T3), red("v_add_f32", RINV + 2, T1)))
            run_valu([valu("v_mul_f32", T2, NEGC, MXR[3]), trans("v_rcp_f32", RINV + 2, RINV + 2)])
        else: run_valu(mv, sum_fin(2))
        body = sm_exp(3, TMP3, T2)
        half = len(body) // 2
        run_valu(body[:half])
        acq_v(h, 0)()
        run_valu(body[half:-20], v_reads(h, 0, 0))
        run_valu(body[-20:])
        p.wait_lgkm(0)
        qbuf_free[0] = True; S['mx3live'] = False
        setX("pv1" if h else "pv")()

    s = St()
    for j in range(4): add_qk(s, 0, j, False)
    add_max(s)
    s.go(); stamp()
    softmax(0)
    s = St()
    s.spread(sum_fin(3), 0, 10)
    for j in range(4): add_pv(s, 0, j)
    for j in range(4): add_qk(s, 1, j, j == 0)
    add_max(s)
    s.go(); stamp()
    softmax(1)
    s = St()
    s.spread(sum_fin(3), 0, 10)
    for j in range(4): add_pv(s, 1, j)
    s.go(); stamp()
    assert S["n"] == ND
    while stq:
        st_service()
        assert store()
    if diag is not None:
        base, idx = diag
        p.wait_vm(0); barrier(); stamp()
        if idx == "min":
            R("s_load_dwordx2 s[32:33], s[0:1], 32"); p.out.append(I("s_waitcnt lgkmcnt(0)", "wait"))
            R("s_and_b32 s33, s33, 0xffff"); R("s_mov_b32 s34, 256"); R("s_mov_b32 s35, 0x20000")
            R("s_not_b32 s90, s44")
            A(valu("v_mov_b32", 6, "0")); A(valu("v_mov_b32", 7, "s90"))
            R("s_mov_b64 exec, 1")
            A(I("buffer_atomic_umax v7, v6, s[32:35], 0 offen sc1", "wait"))
            R("s_waitcnt vmcnt(0)")
            R(f"s_add_u32 s91, s44, {(base-30)*100}")
            R("L_spin0:")
            R("s_memrealtime s[92:93]"); p.out.append(I("s_waitcnt lgkmcnt(0)", "wait"))
            R("s_sub_u32 s92, s92, s91"); R("s_cmp_lt_i32 s92, 0"); R("s_cbranch_scc1 L_spin0")
            A(valu("v_mov_b32", 7, "0"))
            A(I("buffer_atomic_umax v7, v6, s[32:35], 0 offen sc0 sc1", "wait"))
            R("s_waitcnt vmcnt(0)")
            R("v_readfirstlane_b32 s90, v7"); R("s_nop 3")
            R("s_not_b32 s90, s90"); R(f"s_add_u32 s90, s90, {base*100}")
        elif idx is None: R(f"s_add_u32 s90, s44, {base*100}")
        else: R(f"s_add_u32 s90, s{44+2*(idx % nstamp[0])}, {base*100}")
        R("L_spin:")
        R("s_memrealtime s[92:93]"); p.out.append(I("s_waitcnt lgkmcnt(0)", "wait"))
        R("s_sub_u32 s92, s92, s90"); R("s_cmp_lt_i32 s92, 0"); R("s_cbranch_scc1 L_spin")
    elif stamps:
        S["fin"] = True
        p.wait_vm(0); barrier(); stamp()
        ns = nstamp[0]
        R("s_cmp_lg_u32 s3, 0"); R("s_cbranch_scc1 L_end")
        R("s_mov_b32 s32, s14"); R("s_and_b32 s33, s15, 0xffff"); R("s_mov_b32 s34, 0x10000000"); R("s_mov_b32 s35, 0x20000")
        R(f"s_getreg_b32 s{44+2*ns}, hwreg(HW_REG_XCC_ID)"); R(f"s_getreg_b32 s{45+2*ns}, hwreg(HW_REG_HW_ID)"); ns += 1
        R(f"s_mul_i32 s36, s2, {ns*8}")
        A(valu("v_mov_b32", 6, "0"))
        for n in range(ns):
            A(valu("v_mov_b32", 12, f"s{44+2*n}")); A(valu("v_mov_b32", 13, f"s{45+2*n}"))
            A(I(f"buffer_store_dwordx2 v[12:13], v6, s[32:35], s36 offen offset:{n*8}", "store", rd={12, 13, 6}))
    src = HDR + "; @launch grid=(256,1,1) block=(256,1,1) lds=163840\n"
    src += '.amdgcn_target "amdgcn-amd-amdhsa--gfx950"\n.text\n' + f".globl {KN}\n.p2align 8\n.type {KN},@function\n{KN}:\n"
    src += p.text() + "\nL_end:\ns_endpgm\n"
    src += f""".section .rodata,"a"
.p2align 6
.amdhsa_kernel {KN}
  .amdhsa_next_free_vgpr 512
  .amdhsa_next_free_sgpr 102
  .amdhsa_accum_offset 256
  .amdhsa_group_segment_fixed_size 0
  .amdhsa_kernarg_size 48
  .amdhsa_user_sgpr_count 2
  .amdhsa_user_sgpr_kernarg_segment_ptr 1
  .amdhsa_system_sgpr_workgroup_id_x 1
.end_amdhsa_kernel
"""
    return src, f"stamps {nstamp[0]} instrs {len(p.out)} nops {p.nops}/{p.nopstates} skips {S['skips']} slots " + "".join(str(x) for x in slot_of.values()) + "\n     " + " ".join(log)

from base import *
if __name__ == "__main__":
    V = eval(open(sys.argv[1]).read())
    for n, kw in V.items():
        s, info = gen(**kw)
        open(n + ".s", "w").write(s)
        print(n, info)
    print(" ".join(n + ".s" for n in V))
    print(json.dumps(["work/icscrub.s", "work/sens.sh", "work/idle100.s", "work/k_br.s", "work/bench.py", "cdna_kernels/cdna_launch.py", "cdna_kernels/cdna_unwritten_srd_check.py", "work/scrub_read.s"] + ["work/" + n + ".s" for n in V]))
```
